```python
import torch

def _softmax(x, axis=-1):
    return torch.softmax(x, dim=axis)

def _gelu(x):
    return torch.nn.functional.gelu(x, approximate='tanh')

def _silu(x):
    return torch.nn.functional.silu(x)

def _sigmoid(x):
    return torch.sigmoid(x)

def _layernorm(x, axis=-1, eps=1e-05):
    m = x.mean(dim=axis, keepdim=True)
    v = x.var(dim=axis, keepdim=True, unbiased=False)
    return (x - m) / torch.sqrt(v + eps)

def _scatter_add(tgt, idx, src, axis=0):
    return tgt.clone().index_add_(axis, idx, src)

def _segment_sum(src, seg, n):
    out = torch.zeros((n,) + src.shape[1:], dtype=src.dtype)
    return out.index_add_(0, seg, src)

def _pad(x, pw):
    flat = tuple((v for pair in reversed(pw) for v in pair))
    return torch.nn.functional.pad(x, flat)
kernel_name = 'adaLN_cond__spectral_gfnet__glu_gated_reglu__prompt'

def setup_inputs():

    _w = lambda a: (lambda t: t.to(torch.bfloat16) if t.is_floating_point() else t)(torch.as_tensor(a))

    def _A_setup():
        B, S, D = (1, 2048, 576)
        Df = D // 2 + 1
        return {'x': _w((lambda *s: torch.randn(*s, dtype=torch.bfloat16) * 0.05)(B, S, D)), 'w_r': _w((lambda *s: torch.randn(*s, dtype=torch.bfloat16) * 3.2)(S, Df) * 0.02), 'w_i': _w((lambda *s: torch.randn(*s, dtype=torch.bfloat16) * 3.2)(S, Df) * 0.02)}
    _A_in = _A_setup()

    def _B_setup():
        B, S, D, F = (1, 2048, 576, 4608)
        return {'x': _w((lambda *s: torch.randn(*s, dtype=torch.bfloat16) * 0.05)(B, S, D)), 'W_gate': _w((lambda *s: torch.randn(*s, dtype=torch.bfloat16) * 0.4)(D, F) * (2.0 / D) ** 0.5), 'W_up': _w((lambda *s: torch.randn(*s, dtype=torch.bfloat16) * 0.4)(D, F) * (2.0 / D) ** 0.5), 'W_down': _w((lambda *s: torch.randn(*s, dtype=torch.bfloat16) * 0.4)(F, D) * (1.0 / F) ** 0.5)}
    _B_in = _B_setup()
    return {'A_x': _A_in['x'], 'A_w_r': _A_in['w_r'], 'A_w_i': _A_in['w_i'], 'B_x': _B_in['x'], 'B_W_gate': _B_in['W_gate'], 'B_W_up': _B_in['W_up'], 'B_W_down': _B_in['W_down'], 'c': _w((lambda *s: torch.randn(*s, dtype=torch.bfloat16) * 0.1)(1, 576) * 8.0), 'w_mod': _w((lambda *s: torch.randn(*s, dtype=torch.bfloat16) * 0.1)(576, 6 * 576) * 576 ** (-0.5) * 8.0)}

def reference(A_x, A_w_r, A_w_i, B_x, B_W_gate, B_W_up, B_W_down, c, w_mod):

    def _A_ref(x, w_r, w_i):
        B, S, D = x.shape
        X = (lambda x, axes=(-2, -1): torch.fft.rfft2(x.float(), dim=axes))(x, axes=(-2, -1))
        W = w_r + 1j * w_i
        X = X * W
        y = (lambda x, s, axes=(-2, -1): torch.fft.irfft2(x, s=s, dim=axes).to(torch.bfloat16))(X, (S, D), axes=(-2, -1))
        return y

    def _B_ref(x, W_gate, W_up, W_down):
        gate = torch.einsum('bsd,df->bsf', x, W_gate)
        up = torch.einsum('bsd,df->bsf', x, W_up)
        gate = gate * (lambda x, dt: x.to(dt))(gate > 0, gate.dtype)
        h = gate * up
        return torch.einsum('bsf,fd->bsd', h, W_down)
    x = A_x
    mod = (_silu(c) @ w_mod).reshape(c.shape[0], 6, 1, -1)
    sa, ca, ga, sb, cb, gb = (mod[:, 0].clone(), mod[:, 1].clone(), mod[:, 2].clone(), mod[:, 3].clone(), mod[:, 4].clone(), mod[:, 5].clone())
    h = _layernorm(x, axis=-1) * (1 + ca) + sa
    x = x + ga * _A_ref(h, A_w_r, A_w_i)
    h = _layernorm(x, axis=-1) * (1 + cb) + sb
    x = x + gb * _B_ref(h, B_W_gate, B_W_up, B_W_down)
    return x
```

```python
import re

REG = re.compile(r'(?<![\w.])([vas])(\d+)(?![\w:\[])|(?<![\w.])([vas])\[(\d+):(\d+)\]')
def regs_of(tok):
    out = []
    for m in REG.finditer(tok):
        if m.group(1): out.append((m.group(1), int(m.group(2))))
        else: out += [(m.group(3), i) for i in range(int(m.group(4)), int(m.group(5)) + 1)]
    if re.search(r'(?<![\w])vcc(?![\w])', tok): out += [('s', 'vcc')]
    if re.search(r'(?<![\w])vcc_lo(?![\w])', tok): out += [('s', 'vcc')]
    if re.search(r'(?<![\w])m0(?![\w])', tok): out += [('s', 'm0')]
    if re.search(r'(?<![\w])exec(_lo|_hi)?(?![\w])', tok): out += [('s', 'exec')]
    return out

TRANS = ('v_exp_f32', 'v_log_f32', 'v_rcp_f32', 'v_rsq_f32', 'v_sqrt_f32', 'v_sin_f32', 'v_cos_f32')

class Ins:
    def __init__(self, text):
        self.text = text
        t = text.split(';')[0].strip()
        self.label = t.endswith(':')
        self.directive = t.startswith('.')
        self.op = ''
        self.w = []; self.r = []; self.kind = None
        self.srcC = []; self.srcAB = []; self.sdata = []
        if not t or self.label or self.directive: return
        sp = t.split(None, 1)
        op = self.op = sp[0]
        rest = sp[1] if len(sp) > 1 else ''
        ops = [x.strip() for x in re.split(r',(?![^\[]*\])', rest)]
        R = [regs_of(x) for x in ops]
        fl = lambda L: [y for x in L for y in x]
        if op.startswith('v_mfma'):
            self.kind = 'mfma'; self.passes = 4 if '16x16x32' in op else 8
            self.w = R[0]; self.srcAB = R[1] + R[2]; self.srcC = R[3]; self.r = fl(R[1:])
        elif op.startswith('v_'):
            self.kind = 'valu'
            if op.startswith('v_cmpx'):
                self.w = R[0] + [('s', 'exec')]; self.r = fl(R[1:])
            elif op.startswith('v_permlane') and 'swap' in op or op.startswith('v_swap'):
                self.w = R[0] + R[1]; self.r = R[0] + R[1]
            elif re.match(r'v_(add|sub|subrev|addc|subb)_co', op) or op.startswith('v_mad_u64') or op.startswith('v_div_scale'):
                self.w = R[0] + R[1]; self.r = fl(R[2:])
            else:
                self.w = R[0]; self.r = fl(R[1:])
                if op.startswith(('v_fmac', 'v_dot2c', 'v_writelane', 'v_pk_fmac')) or 'dpp' in t or 'row_' in t or 'quad_perm' in t or 'sdwa' in op: self.r = self.r + R[0]
            self.dpp = ('row_' in t or 'quad_perm' in t or 'wave_' in t)
            self.trans = op.replace('_e32', '').replace('_e64', '') in TRANS
        elif op.startswith('ds_'):
            self.kind = 'ds'
            if 'read' in op or 'permute' in op or 'swizzle' in op or '_rtn' in op:
                self.w = R[0]; self.r = fl(R[1:])
                if 'd16' in op: self.r = self.r + R[0]
            else: self.r = fl(R)
        elif op.startswith(('buffer_', 'global_')):
            self.kind = 'vmem'
            lds = re.search(r'(?<!\w)lds(?!\w)', t) is not None or 'load_lds' in op
            self.lds = lds
            if 'load' in op and not lds:
                self.w = R[0]; self.r = fl(R[1:])
            elif lds:
                self.r = fl(R) + [('s', 'm0')]
            else:
                self.r = fl(R)
                if op.startswith('buffer_'): self.sdata = R[0]
                else: self.sdata = R[1]
                if not re.search(r'x[34]', op): self.sdata = []
                if 'atomic' in op and ' sc0' in t: self.w = R[0]
        elif op.startswith('s_'):
            self.kind = 'salu'
            if op.startswith(('s_cmp', 's_cbranch', 's_branch', 's_waitcnt', 's_barrier', 's_nop', 's_endpgm', 's_setprio', 's_sleep', 's_bitcmp', 's_set_gpr_idx_off')):
                self.r = fl(R)
            elif op.startswith('s_set_gpr_idx_on'):
                self.r = fl(R); self.w = [('s', 'm0')]
            elif 'saveexec' in op:
                self.w = R[0] + [('s', 'exec')]; self.r = fl(R[1:])
            else:
                self.w = R[0]; self.r = fl(R[1:])
        else:
            raise ValueError("unknown op " + t)
    def states(self):
        if self.op == 's_nop': return int(self.text.split(';')[0].split()[1], 0) + 1
        return 0 if (self.label or self.directive or not self.op) else 1

def need(p, c):
    n = 0
    pw = set(p.w)
    ov = lambda L: bool(pw & set(L))
    if p.kind == 'valu':
        vw = {x for x in pw if x[0] in 'va'}
        sw = {x for x in pw if x[0] == 's'}
        if c.kind == 'mfma' and vw & set(c.r): n = max(n, 2)
        if c.kind == 'mfma' and ('s', 'exec') in sw: n = max(n, 4)
        if c.kind == 'valu':
            if c.dpp and vw & set(c.r): n = max(n, 2)
            if c.dpp and ('s', 'exec') in sw: n = max(n, 5)
            if c.op.startswith('v_permlane') and vw & set(c.r): n = max(n, 2)
            if c.op.startswith(('v_readlane', 'v_readfirstlane')) and vw & set(c.r): n = max(n, 1)
            if p.trans and not c.trans and vw & set(c.r): n = max(n, 1)
            if p.trans and c.trans and vw & set(c.r): n = max(n, 1)
            if sw & set(c.r): n = max(n, 4 if c.op.startswith(('v_readlane', 'v_writelane', 'v_div_fmas')) else 2)
            if ('s', 'exec') in sw and c.op.startswith(('v_readlane', 'v_readfirstlane', 'v_writelane', 'v_permlane')): n = max(n, 4)
            if 'sdwa' in p.op and vw & set(c.r): n = max(n, 1)
        if c.kind == 'vmem' and sw & set(c.r): n = max(n, 5)
        if c.kind == 'salu' and sw & set(c.r): n = max(n, 1)
        if p.trans and c.kind in ('ds', 'vmem') and vw & set(c.r): n = max(n, 1)
    if p.kind == 'salu':
        if ('s', 'm0') in pw and c.kind == 'vmem' and getattr(c, 'lds', False): n = max(n, 1)
    if p.kind == 'mfma':
        big = {4: 8, 8: 12}[p.passes]
        if c.kind == 'mfma':
            if ov(c.srcAB): n = max(n, big)
            if ov(c.srcC) and not (c.srcC == p.w and c.passes == p.passes): n = max(n, {4: 6, 8: 10}[p.passes])
            if ov(c.w) and not (c.w == p.w and c.passes == p.passes): n = max(n, {4: 6, 8: 10}[p.passes])
        elif c.kind in ('valu', 'ds', 'vmem'):
            if ov(c.r) or ov(c.w): n = max(n, big)
            if c.kind == 'valu' and set(p.srcC) & set(c.w): n = max(n, {4: 3, 8: 7}[p.passes])
    if p.kind == 'vmem' and p.sdata:
        if set(p.sdata) & set(c.w): n = max(n, 2 if c.kind in ('valu', 'mfma') else 1)
    return n

class Asm:
    def __init__(self):
        self.L = []
        self.strict = False
    def __call__(self, text):
        for ln in text.split('\n'):
            if ln.strip(): self.L.append((ln.strip(), self.strict))
    def finish(self, loops=()):
        out = []
        def req(hist, c):
            d = 0; n = 0
            for p in reversed(hist):
                k = need(p, c)
                if k > d: n = max(n, k - d)
                d += p.states()
                if d > 20: break
            return n
        for (t, strict) in self.L:
            c = Ins(t)
            if c.op:
                n = req(out, c)
                if n:
                    if strict: raise RuntimeError(f"hazard: needs {n} more wait states before: {t}\n  after: " + "\n         ".join(x.text for x in out[-12:]))
                    out.append(Ins(f"s_nop {n-1}"))
            out.append(c)
        labels = {x.text[:-1]: i for i, x in enumerate(out) if x.label}
        for i, x in enumerate(out):
            if x.op.startswith(('s_cbranch', 's_branch')):
                tgt = x.text.split(';')[0].split()[1]
                j = labels[tgt]
                hist = out[max(0, i - 30):i + 1]
                for y in out[j:j + 30]:
                    if y.op:
                        n = req(hist, y)
                        if n: raise RuntimeError(f"hazard across branch {x.text} -> {y.text} needs {n}")
                        if y.op.startswith(('s_branch', 's_endpgm')): break
                    hist = hist + [y]
        return "\n".join((x.text if (x.label or x.directive) else "  " + x.text) for x in out)

def kd(name, vgpr, accum, sgpr=96):
    return f"""
.section .rodata,"a"
.p2align 6
.amdhsa_kernel {name}
  .amdhsa_next_free_vgpr {vgpr}
  .amdhsa_next_free_sgpr {sgpr}
  .amdhsa_accum_offset {accum}
  .amdhsa_group_segment_fixed_size 0
  .amdhsa_kernarg_size 96
  .amdhsa_user_sgpr_count 2
  .amdhsa_user_sgpr_kernarg_segment_ptr 1
  .amdhsa_system_sgpr_workgroup_id_x 1
  .amdhsa_float_denorm_mode_32 3
.end_amdhsa_kernel
.text
"""
def head(name):
    return f".globl {name}\n.p2align 8\n.type {name},@function\n{name}:\n"
def vr(b, n=1): return f"v{b}" if n == 1 else f"v[{b}:{b+n-1}]"
def ar(b, n=1): return f"a{b}" if n == 1 else f"a[{b}:{b+n-1}]"
def sr(b, n=1): return f"s{b}" if n == 1 else f"s[{b}:{b+n-1}]"
import struct
def f2u(x): return "0x%08x" % struct.unpack("<I", struct.pack("<f", x))[0]
```

```python
from asmlib import *
import math
S, D, F = 2048, 576, 4608
KA_X, KA_WR, KA_WI, KA_WG, KA_WU, KA_WD, KA_C, KA_WM, KA_OUT, KA_DBG, KA_WS = 0, 8, 16, 32, 40, 48, 56, 64, 72, 80, 88
WS_MOD = 0
WS_WT = 0x10000;  SZ_COL = 289 * 8192
WS_HT = 0x300000
WS_ZT = 0x600000; ZT_STRIDE = 18560; SZ_ZT = 128 * ZT_STRIDE
WS_X1 = 0x900000; SZ_X = S * D * 2
WS_H2 = 0xC00000
WS_PART = 0x1000000; SZ_PART = 256 * 147456

def srd(a, dst, ptr, off, size):
    if off:
        a(f"s_add_u32 s{dst}, s{ptr}, {off}")
        a(f"s_addc_u32 s{dst+1}, s{ptr+1}, 0")
    elif dst != ptr:
        a(f"s_mov_b32 s{dst}, s{ptr}")
        a(f"s_mov_b32 s{dst+1}, s{ptr+1}")
    a(f"s_mov_b32 s{dst+2}, {size}")
    a(f"s_mov_b32 s{dst+3}, 0x20000")

def sincos(a, vc, vs, vn, inv, tmp):
    a(f"v_cvt_f32_u32 v{tmp}, v{vn}")
    a(f"v_mul_f32 v{tmp}, {f2u(inv)}, v{tmp}")
    a(f"v_fract_f32 v{tmp}, v{tmp}")
    a(f"v_cos_f32 v{vc}, v{tmp}")
    a(f"v_sin_f32 v{vs}, v{tmp}")

def f32_consts(a, vm, vg, C, Sn, t0):
    n, T, c, s, mm = t0, t0 + 1, t0 + 2, t0 + 6, t0 + 10
    for i in range(4):
        a(f"v_lshl_add_u32 v{n}, v{vg}, 2, {i}")
        a(f"v_mul_u32_u24 v{n}, v{n}, v{vm}")
        sincos(a, c + i, s + i, n, 1.0 / 32, T)
    a(f"v_and_b32 v{mm}, 1, v{vm}")
    a(f"v_mul_u32_u24 v{mm}, 0x8000, v{mm}")
    a(f"v_lshl_or_b32 v{mm}, v{mm}, 16, v{mm}")
    for (dst, src) in ((C, c), (Sn, s)):
        a(f"v_cvt_pk_bf16_f32 v{dst}, v{src}, v{src+1}")
        a(f"v_cvt_pk_bf16_f32 v{dst+1}, v{src+2}, v{src+3}")
        a(f"v_xor_b32 v{dst+2}, v{dst}, v{mm}")
        a(f"v_xor_b32 v{dst+3}, v{dst+1}, v{mm}")

def xor4(a, dst, src, mask):
    for i in range(4): a(f"v_xor_b32 v{dst+i}, {mask}, v{src+i}")

def unpack(a, dst, src, n):
    for i in range(n):
        a(f"v_lshlrev_b32 v{dst+2*i}, 16, v{src+i}")
        a(f"v_and_b32 v{dst+2*i+1}, 0xffff0000, v{src+i}")

def half_reduce(a, v, t):
    for r in (8, 4, 2, 1):
        a(f"v_add_f32_dpp v{v}, v{v}, v{v} row_ror:{r} row_mask:0xf bank_mask:0xf")
    a(f"v_mov_b32 v{t}, v{v}")
    a(f"v_permlane16_swap_b32 v{v}, v{t}")
    a(f"v_add_f32 v{v}, v{v}, v{t}")

def layernorm18(a, X, t):
    a(f"v_add_f32 v{t}, v{X}, v{X+1}")
    a(f"v_add_f32 v{t+1}, v{X+2}, v{X+3}")
    for i in range(4, 18, 2):
        a(f"v_add_f32 v{t}, v{t}, v{X+i}")
        a(f"v_add_f32 v{t+1}, v{t+1}, v{X+i+1}")
    a(f"v_add_f32 v{t}, v{t}, v{t+1}")
    half_reduce(a, t, t + 1)
    a(f"v_mul_f32 v{t}, {f2u(1.0/576)}, v{t}")
    for i in range(18): a(f"v_sub_f32 v{X+i}, v{X+i}, v{t}")
    a(f"v_mul_f32 v{t+1}, v{X}, v{X}")
    a(f"v_mul_f32 v{t+2}, v{X+1}, v{X+1}")
    for i in range(2, 18, 2):
        a(f"v_fmac_f32 v{t+1}, v{X+i}, v{X+i}")
        a(f"v_fmac_f32 v{t+2}, v{X+i+1}, v{X+i+1}")
    a(f"v_add_f32 v{t+1}, v{t+1}, v{t+2}")
    half_reduce(a, t + 1, t + 2)
    a(f"v_mov_b32 v{t+2}, {f2u(1e-5)}")
    a(f"v_fmac_f32 v{t+2}, {f2u(1.0/576)}, v{t+1}")
    a(f"v_rsq_f32 v{t+2}, v{t+2}")
    for i in range(18): a(f"v_mul_f32 v{X+i}, v{X+i}, v{t+2}")

def cmul(a, xr, xi, wr, wi, t, conj=False):
    if not conj:
        a(f"v_mul_f32 v{t}, v{xi}, v{wi}")
        a(f"v_mul_f32 v{xi}, v{xi}, v{wr}")
        a(f"v_fmac_f32 v{xi}, v{xr}, v{wi}")
        a(f"v_fma_f32 v{xr}, v{xr}, v{wr}, -v{t}")
    else:
        a(f"v_mul_f32 v{t}, v{xi}, v{wi}")
        a(f"v_mul_f32 v{xi}, v{xi}, v{wr}")
        a(f"v_fma_f32 v{xi}, -v{xr}, v{wi}, v{xi}")
        a(f"v_fma_f32 v{xr}, v{xr}, v{wr}, v{t}")

def mfma(a, d, A, B, c=None, fa='v', fb='v', fd='v'):
    cs = "0" if c is None else f"{fd}[{c}:{c+3}]"
    a(f"v_mfma_f32_16x16x32_bf16 {fd}[{d}:{d+3}], {fa}[{A}:{A+3}], {fb}[{B}:{B+3}], {cs}")
```

```python
from common import *
def k0(name="k0_kernel"):
    a = Asm()
    a(f"s_cmp_ge_u32 s2, 118\ns_cbranch_scc1 K0_END")
    a(f"s_load_dwordx2 s[40:41], s[0:1], {KA_WS}")
    a("v_lshrrev_b32 v1, 6, v0\nv_and_b32 v2, 63, v0")
    a("s_cmp_ge_u32 s2, 54\ns_cbranch_scc1 K0_TR")
    a(f"s_load_dwordx4 s[4:7], s[0:1], {KA_C}")
    a("v_lshrrev_b32 v3, 3, v0\nv_and_b32 v4, 7, v0")
    a("v_mul_u32_u24 v5, 6912, v3\nv_lshl_add_u32 v5, v4, 4, v5\nv_lshlrev_b32 v6, 1, v3")
    a("s_lshl_b32 s20, s2, 7")
    a("s_waitcnt lgkmcnt(0)")
    srd(a, 8, 4, 0, 1152); srd(a, 12, 6, 0, 576 * 6912); srd(a, 16, 40, WS_MOD, 6912)
    Cb, W = 64, 8
    for j in range(9): a(f"buffer_load_ushort v{Cb+j}, v6, s[8:11], 0 offen offset:{128*j}")
    for j in range(9):
        a(f"buffer_load_dwordx4 v[{W+4*j}:{W+4*j+3}], v5, s[12:15], s20 offen")
        if j < 8: a("s_add_u32 s20, s20, 442368")
    a("s_waitcnt vmcnt(9)")
    T = 76
    for j in range(9):
        a(f"v_lshlrev_b32 v{Cb+j}, 16, v{Cb+j}")
        a(f"v_mul_f32 v{T+j}, {f2u(-1.4426950408889634)}, v{Cb+j}")
        a(f"v_exp_f32 v{T+j}, v{T+j}")
    for j in range(9): a(f"v_add_f32 v{T+j}, 1.0, v{T+j}")
    for j in range(9): a(f"v_rcp_f32 v{T+j}, v{T+j}")
    for j in range(9): a(f"v_mul_f32 v{T+j}, v{Cb+j}, v{T+j}")
    for j in range(9): a(f"v_cvt_pk_bf16_f32 v{T+j}, v{T+j}, v{T+j}")
    for j in range(9): a(f"v_and_b32 v{Cb+j}, 0xffff0000, v{T+j}")
    A = 48
    for j in range(9):
        a(f"s_waitcnt vmcnt({8-j})")
        unpack(a, T, W + 4 * j, 4)
        for e in range(8):
            if j == 0: a(f"v_mul_f32 v{A+e}, v{Cb}, v{T+e}")
            else: a(f"v_fmac_f32 v{A+e}, v{Cb+j}, v{T+e}")
    for p in range(4):
        a(f"v_permlane32_swap_b32 v{A+2*p}, v{A+2*p+1}")
    for p in range(4):
        a(f"v_add_f32 v{A+2*p}, v{A+2*p}, v{A+2*p+1}")
    a(f"v_permlane16_swap_b32 v{A}, v{A+2}\nv_permlane16_swap_b32 v{A+4}, v{A+6}")
    a(f"v_add_f32 v{A}, v{A}, v{A+2}\nv_add_f32 v{A+4}, v{A+4}, v{A+6}")
    a("v_bfe_u32 v7, v2, 5, 1\nv_bfe_u32 v8, v2, 4, 1\nv_lshl_or_b32 v7, v8, 1, v7\nv_bfe_u32 v8, v2, 3, 1\nv_lshl_or_b32 v7, v8, 2, v7\nv_lshl_or_b32 v7, v4, 3, v7")
    a(f"v_add_f32_dpp v{A}, v{A}, v{A} row_ror:8 row_mask:0xf bank_mask:0xf")
    a(f"v_add_f32_dpp v{A+4}, v{A+4}, v{A+4} row_ror:8 row_mask:0xf bank_mask:0xf")
    a("v_cmp_eq_u32 vcc, 1, v8\nv_lshlrev_b32 v7, 2, v7\nv_lshl_add_u32 v7, v1, 8, v7")
    a(f"v_cndmask_b32 v{A}, v{A}, v{A+4}, vcc")
    a(f"ds_write_b32 v7, v{A}\ns_waitcnt lgkmcnt(0)\ns_barrier")
    a("v_readfirstlane_b32 s21, v1\ns_cmp_lg_u32 s21, 0\ns_cbranch_scc1 K0_END")
    a("v_lshlrev_b32 v7, 2, v2")
    for w in range(8): a(f"ds_read_b32 v{8+w}, v7 offset:{256*w}")
    a("s_mul_i32 s22, s2, 57\ns_lshr_b32 s22, s22, 9")
    a("s_mov_b32 s23, 0\ns_cmp_eq_u32 s22, 1\ns_cselect_b32 s23, 1.0, s23\ns_cmp_eq_u32 s22, 4\ns_cselect_b32 s23, 1.0, s23")
    a("s_lshl_b32 s20, s2, 7\nv_lshlrev_b32 v7, 1, v2")
    a("s_waitcnt lgkmcnt(0)")
    a("v_add_f32 v8, v8, v9\nv_add_f32 v10, v10, v11\nv_add_f32 v12, v12, v13\nv_add_f32 v14, v14, v15")
    a("v_add_f32 v8, v8, v10\nv_add_f32 v12, v12, v14\nv_add_f32 v8, v8, v12")
    a("v_cvt_pk_bf16_f32 v8, v8, v8\nv_and_b32 v8, 0xffff0000, v8\nv_add_f32 v8, s23, v8\nv_cvt_pk_bf16_f32 v8, v8, v8")
    a("buffer_store_short v8, v7, s[16:19], s20 offen")
    a("s_endpgm")
    a("K0_TR:")
    a(f"s_load_dwordx4 s[4:7], s[0:1], {KA_WR}")
    a("v_readfirstlane_b32 s21, v1")
    a("s_sub_u32 s22, s2, 54\ns_and_b32 s23, s22, 7\ns_lshr_b32 s24, s22, 3")
    a("s_and_b32 s25, s21, 3\ns_lshl_b32 s25, s25, 6\ns_lshl_b32 s26, s24, 8\ns_add_u32 s25, s25, s26\ns_lshl_b32 s26, s23, 3\ns_add_u32 s25, s25, s26\ns_mul_i32 s25, s25, 578")
    a("s_mul_i32 s26, s21, 5120\ns_mov_b32 m0, s26")
    a("v_lshlrev_b32 v3, 4, v2")
    a("s_waitcnt lgkmcnt(0)")
    a("s_cmp_ge_u32 s21, 4\ns_cselect_b32 s8, s6, s4\ns_cselect_b32 s9, s7, s5")
    a(f"s_mov_b32 s10, {2048*578}\ns_mov_b32 s11, 0x20000")
    for k in range(4): a(f"buffer_load_dwordx4 v3, s[8:11], s25 offen offset:{1024*k} lds")
    a("s_add_u32 m0, s26, 4096\ns_add_u32 s25, s25, 4096")
    a("buffer_load_dwordx4 v3, s[8:11], s25 offen lds")
    srd(a, 16, 40, WS_WT, SZ_COL)
    a("v_and_b32 v4, 7, v0\nv_lshrrev_b32 v5, 3, v0")
    a("v_mul_u32_u24 v6, 578, v4\nv_lshl_add_u32 v6, v5, 1, v6")
    a("v_lshlrev_b32 v7, 13, v5\nv_lshl_add_u32 v7, v4, 4, v7")
    a("s_lshr_b32 s27, s23, 1\ns_lshl_b32 s27, s27, 11\ns_lshl_b32 s28, s24, 8\ns_add_u32 s27, s27, s28\ns_and_b32 s28, s23, 1\ns_lshl_b32 s28, s28, 7\ns_add_u32 s27, s27, s28")
    a("s_waitcnt vmcnt(0)\ns_barrier")
    def fin(r):
        for j in range(4): a(f"v_lshl_or_b32 v{8+4*r+j}, v{32+4*r+j}, 16, v{8+4*r+j}")
        a(f"buffer_store_dwordx4 v[{8+4*r}:{11+4*r}], v7, s[16:19], s27 offen")
        if r < 4: a(f"s_add_u32 s27, s27, {64*8192}")
    for r in range(5):
        for j in range(4):
            a(f"ds_read_u16 v{8+4*r+j}, v6 offset:{r*128+j*5120}")
            a(f"ds_read_u16 v{32+4*r+j}, v6 offset:{r*128+(4+j)*5120}")
        if r:
            a("s_waitcnt lgkmcnt(8)")
            fin(r - 1)
    a("s_waitcnt lgkmcnt(0)")
    fin(4)
    a("K0_END:\ns_endpgm")
    return head(name) + a.finish() + "\n", kd(name, 96, 96), f"; @launch kernel={name} grid=(118,1,1) block=(512,1,1) lds=40960"
```

```python
from common import *
TB = 18432
def load_row3(a, dst, voff, srd_, soff):
    a(f"buffer_load_dwordx4 v[{dst}:{dst+3}], v{voff}, s[{srd_}:{srd_+3}], {soff} offen")
    a(f"buffer_load_dwordx4 v[{dst+4}:{dst+7}], v{voff}, s[{srd_}:{srd_+3}], {soff} offen offset:512")
    a(f"buffer_load_dword v{dst+8}, v{voff+1}, s[{srd_}:{srd_+3}], {soff} offen")

def k1(name="k1_kernel"):
    a = Asm()
    a("s_cmp_ge_u32 s2, 128\ns_cbranch_scc1 K1_END")
    a(f"s_load_dwordx2 s[4:5], s[0:1], {KA_X}\ns_load_dwordx2 s[40:41], s[0:1], {KA_WS}")
    a("v_lshrrev_b32 v1, 6, v0\nv_and_b32 v2, 63, v0\nv_and_b32 v3, 31, v0\nv_lshrrev_b32 v4, 5, v0")
    a("v_readfirstlane_b32 s21, v1")
    a("s_and_b32 s22, s2, 31\ns_lshr_b32 s23, s2, 5")
    a("s_lshl_b32 s24, s23, 9\ns_add_u32 s24, s24, s22\ns_mul_i32 s24, s24, 1152")
    a("v_lshlrev_b32 v8, 4, v3\nv_lshlrev_b32 v9, 2, v3\nv_add_u32 v9, 1024, v9")
    a(f"v_mul_u32_u24 v5, {32*1152}, v4\nv_add_u32 v6, v5, v8\nv_add_u32 v7, v5, v9")
    a("s_waitcnt lgkmcnt(0)")
    srd(a, 8, 4, 0, SZ_X); srd(a, 12, 40, WS_MOD, 6912); srd(a, 16, 40, WS_HT, SZ_COL)
    XP, SAP, C1P = 12, 22, 32
    load_row3(a, XP, 6, 8, "s24")
    a("s_movk_i32 s25, 1152")
    load_row3(a, SAP, 8, 12, "0")
    load_row3(a, C1P, 8, 12, "s25")
    a("v_and_b32 v10, 15, v2\nv_lshrrev_b32 v11, 4, v2")
    B18R, B18I = 44, 48
    TWR, TWI = 52, 60
    FR0, NFI0, FI0, FR1, NFI1, NFR1 = 68, 72, 76, 80, 84, 88
    T = 96
    for i in range(8):
        a(f"v_lshl_add_u32 v{T}, v11, 3, {i}")
        a(f"v_cmp_gt_u32 vcc, 18, v{T}")
        a(f"v_mul_u32_u24 v{T}, v{T}, v10")
        sincos(a, T + 2 + i, T + 10 + i, T, 1.0 / 18, T + 1)
        a(f"v_cndmask_b32 v{T+2+i}, 0, v{T+2+i}, vcc")
        a(f"v_cndmask_b32 v{T+10+i}, 0, v{T+10+i}, vcc")
    for p in range(4):
        a(f"v_cvt_pk_bf16_f32 v{B18R+p}, v{T+2+2*p}, v{T+3+2*p}")
        a(f"v_cvt_pk_bf16_f32 v{B18I+p}, -v{T+10+2*p}, -v{T+11+2*p}")
    for t in range(2):
        for j in range(4):
            a(f"v_lshl_add_u32 v{T}, v11, 2, {16*t+j}")
            a(f"v_mul_u32_u24 v{T}, v{T}, v10")
            sincos(a, TWR + 4 * t + j, TWI + 4 * t + j, T, 1.0 / 576, T + 1)
    f32_consts(a, 10, 11, FR0, NFI0, T)
    xor4(a, FI0, NFI0, "0x80008000")
    xor4(a, FR1, FR0, "0x80000000")
    xor4(a, NFI1, NFI0, "0x80000000")
    xor4(a, NFR1, FR0, "0x00008000")
    a("v_mul_u32_u24 v5, 1152, v4\nv_add_u32 v42, v5, v8\nv_add_u32 v43, v5, v9")
    a("v_lshrrev_b32 v5, 2, v10\nv_lshl_add_u32 v5, v11, 3, v5\nv_and_b32 v94, 3, v10\nv_lshlrev_b32 v94, 3, v94")
    a("s_mul_i32 s26, s21, 2304\nv_add_u32 v94, s26, v94")
    a("v_min_u32 v92, 17, v5\nv_lshl_add_u32 v92, v92, 6, v94")
    a("v_add_u32 v5, 4, v5\nv_min_u32 v93, 17, v5\nv_lshl_add_u32 v93, v93, 6, v94")
    a("s_lshl_b32 s26, s21, 1\ns_and_b32 s27, s26, 3\ns_bfe_u32 s28, s26, 0x10002\ns_lshl_b32 s28, s28, 3\ns_or_b32 s27, s27, s28\ns_bfe_u32 s28, s26, 0x10003\ns_lshl_b32 s28, s28, 2\ns_or_b32 s27, s27, s28")
    a(f"s_lshl_b32 s27, s27, 5\ns_add_u32 s27, s27, {TB}")
    a("v_mul_u32_u24 v94, 2056, v10\nv_lshl_add_u32 v94, v11, 3, v94\nv_add_u32 v94, s27, v94")
    X, SA, C1 = 96, 114, 132
    a("s_waitcnt vmcnt(6)")
    unpack(a, X, XP, 9)
    layernorm18(a, X, 150)
    a("s_waitcnt vmcnt(0)")
    unpack(a, SA, SAP, 9); unpack(a, C1, C1P, 9)
    for i in range(18): a(f"v_fma_f32 v{X+i}, v{X+i}, v{C1+i}, v{SA+i}")
    for i in range(9): a(f"v_cvt_pk_bf16_f32 v{XP+i}, v{X+2*i}, v{X+2*i+1}")
    a(f"ds_write_b128 v42, v[{XP}:{XP+3}]\nds_write_b128 v42, v[{XP+4}:{XP+7}] offset:512\nds_write_b32 v43, v{XP+8}")
    A = 96
    Y = 112
    P = 144
    Z = 160
    for r in range(2):
        for t in range(2):
            for q in range(2):
                d = A + 8 * r + 4 * t + 2 * q
                a(f"ds_read_b64_tr_b16 v[{d}:{d+1}], v{92+q} offset:{r*1152+t*32}")
    for r in range(2):
        a(f"s_waitcnt lgkmcnt({4*(1-r)})")
        for t in range(2):
            mfma(a, Y + 16 * r + 8 * t, A + 8 * r + 4 * t, B18R)
            mfma(a, Y + 16 * r + 8 * t + 4, A + 8 * r + 4 * t, B18I)
    for r in range(2):
        for t in range(2):
            for j in range(4):
                cmul(a, Y + 16 * r + 8 * t + j, Y + 16 * r + 8 * t + 4 + j, TWR + 4 * t + j, TWI + 4 * t + j, 5, conj=True)
            for pl in range(2):
                y = Y + 16 * r + 8 * t + 4 * pl
                a(f"v_cvt_pk_bf16_f32 v{P+8*r+4*pl+2*t}, v{y}, v{y+1}")
                a(f"v_cvt_pk_bf16_f32 v{P+8*r+4*pl+2*t+1}, v{y+2}, v{y+3}")
        pr, pi = P + 8 * r, P + 8 * r + 4
        z = Z + 16 * r
        mfma(a, z, FR0, pr); mfma(a, z + 4, FR0, pi); mfma(a, z + 8, FR1, pr); mfma(a, z + 12, NFR1, pi)
        mfma(a, z, NFI0, pi, z); mfma(a, z + 4, FI0, pr, z + 4); mfma(a, z + 8, NFI1, pi, z + 8); mfma(a, z + 12, NFI1, pr, z + 12)
    a("v_lshrrev_b32 v5, 1, v11\nv_and_b32 v9, 1, v11\nv_lshlrev_b32 v6, 9, v5\nv_lshl_add_u32 v6, v9, 7, v6")
    a("v_lshlrev_b32 v7, 5, v5\nv_lshl_add_u32 v7, v9, 4, v7")
    a("v_lshrrev_b32 v5, 2, v10\nv_lshl_add_u32 v6, v5, 5, v6\nv_and_b32 v5, 3, v10\nv_lshl_add_u32 v6, v5, 3, v6")
    a("v_mul_u32_u24 v8, 18, v10")
    if True:
        for r in range(2):
            for u in range(4):
                z = Z + 16 * r + 4 * u
                a(f"v_cvt_pk_bf16_f32 v{z}, v{z}, v{z+1}")
                a(f"v_cvt_pk_bf16_f32 v{z+1}, v{z+2}, v{z+3}")
                a(f"ds_write_b64 v94, v[{z}:{z+1}] offset:{u*512+r*32}")
    a("s_and_b32 s26, s21, 1\ns_lshr_b32 s27, s21, 1")
    a("s_lshl_b32 s28, s22, 8\ns_lshl_b32 s29, s23, 6\ns_add_u32 s28, s28, s29")
    a("v_add_u32 v8, s27, v8\nv_sub_u32 v9, 288, v8\ns_cmp_eq_u32 s26, 1\ns_cselect_b64 vcc, -1, 0")
    a("v_cndmask_b32 v8, v8, v9, vcc\nv_lshl_add_u32 v7, v8, 13, v7")
    a(f"s_mov_b32 s30, {4*8192}\ns_cselect_b32 s30, {-4*8192 & 0xffffffff}, s30")
    a("v_add_u32 v12, s30, v7\nv_add_u32 v13, s30, v12")
    a("s_cmp_eq_u32 s21, 1\ns_cselect_b64 s[32:33], -1, 0\nv_cmp_lt_u32 vcc, 0, v10\ns_and_b64 vcc, vcc, s[32:33]")
    a("v_mov_b32 v9, 0x7fffffff\nv_cndmask_b32 v7, v7, v9, vcc")
    a(f"s_mul_i32 s29, s27, 2056\ns_lshl_b32 s31, s26, 10\ns_add_u32 s29, s29, s31\ns_add_u32 s29, s29, {TB}")
    a("v_add_u32 v6, s29, v6")
    a("s_waitcnt lgkmcnt(0)\ns_barrier")
    for u in range(3):
        for q in range(2):
            a(f"ds_read_b64_tr_b16 v[{16+4*u+2*q}:{17+4*u+2*q}], v6 offset:{u*4*2056+q*256}")
    a("s_waitcnt lgkmcnt(4)\nbuffer_store_dwordx4 v[16:19], v7, s[16:19], s28 offen")
    a("s_waitcnt lgkmcnt(2)\nbuffer_store_dwordx4 v[20:23], v12, s[16:19], s28 offen")
    a("s_cmp_ge_u32 s21, 3\ns_cbranch_scc1 K1_END")
    a("s_waitcnt lgkmcnt(0)\nbuffer_store_dwordx4 v[24:27], v13, s[16:19], s28 offen")
    a("K1_END:\ns_endpgm")
    return head(name) + a.finish() + "\n", kd(name, 192, 192), f"; @launch kernel={name} grid=(128,1,1) block=(512,1,1) lds={TB+16*2056}"
```

```python
from common import *
def k2(name="k2_kernel"):
    a = Asm()
    a("s_cmp_ge_u32 s2, 289\ns_cbranch_scc1 K2_END")
    a(f"s_load_dwordx2 s[40:41], s[0:1], {KA_WS}")
    a("v_lshrrev_b32 v1, 6, v0\nv_and_b32 v2, 63, v0\nv_and_b32 v10, 15, v0\nv_bfe_u32 v11, v0, 4, 2")
    a("v_readfirstlane_b32 s21, v1")
    a("v_lshlrev_b32 v3, 8, v10\nv_lshrrev_b32 v4, 1, v11\nv_lshl_add_u32 v3, v4, 6, v3\nv_and_b32 v4, 1, v11\nv_lshl_add_u32 v3, v4, 4, v3")
    a("v_lshlrev_b32 v4, 4, v2\nv_lshl_add_u32 v4, v1, 11, v4")
    a("s_lshl_b32 s24, s2, 13\ns_add_u32 s25, s24, 4096")
    a("s_waitcnt lgkmcnt(0)")
    srd(a, 8, 40, WS_HT, SZ_COL); srd(a, 12, 40, WS_WT, SZ_COL); srd(a, 16, 40, WS_ZT, SZ_ZT)
    X = 16
    W = 48
    for t in range(2):
        for kk in range(2):
            for pl in range(2):
                d = X + 16 * t + 8 * kk + 4 * pl
                a(f"buffer_load_dwordx4 v[{d}:{d+3}], v3, s[8:11], s{24+t} offen offset:{kk*128+pl*32}")
    for t in range(2):
        a(f"buffer_load_dwordx4 v[{W+4*t}:{W+4*t+3}], v4, s[12:15], s24 offen offset:{t*1024}")
    FR, FI, NFI = 56, 64, 72
    TWR, TWI = 80, 88
    GR, GI, NGI = 96, 104, 112
    T = 120
    a("v_lshl_add_u32 v12, v1, 4, v10")
    for i in range(8):
        a(f"v_lshl_add_u32 v{T}, v11, 3, {i}")
        a(f"v_mul_u32_u24 v{T}, v{T}, v12")
        sincos(a, T + 2 + i, T + 10 + i, T, 1.0 / 64, T + 1)
    a(f"v_and_b32 v5, 1, v10\nv_mul_u32_u24 v5, 0x8000, v5\nv_lshl_or_b32 v5, v5, 16, v5")
    for p in range(4):
        a(f"v_cvt_pk_bf16_f32 v{FR+p}, v{T+2+2*p}, v{T+3+2*p}")
        a(f"v_cvt_pk_bf16_f32 v{NFI+p}, v{T+10+2*p}, v{T+11+2*p}")
    xor4(a, FR + 4, FR, "v5"); xor4(a, NFI + 4, NFI, "v5")
    xor4(a, FI, NFI, "0x80008000"); xor4(a, FI + 4, NFI + 4, "0x80008000")
    a(f"s_mov_b32 s26, {f2u(math.sqrt(1.0/2048))}\ns_cmp_eq_u32 s2, 0\ns_cselect_b32 s26, {f2u(1.0/64)}, s26\ns_cmp_eq_u32 s2, 288\ns_cselect_b32 s26, {f2u(1.0/64)}, s26")
    for t in range(2):
        for j in range(4):
            a(f"v_lshl_add_u32 v{T}, v11, 2, {16*t+j}")
            a(f"v_mul_u32_u24 v{T}, v{T}, v12")
            sincos(a, TWR + 4 * t + j, TWI + 4 * t + j, T, 1.0 / 2048, T + 1)
    for i in range(16): a(f"v_mul_f32 v{TWR+i}, s26, v{TWR+i}")
    f32_consts(a, 10, 11, GR, NGI, T)
    xor4(a, GR + 4, GR, "0x80000000"); xor4(a, NGI + 4, NGI, "0x80000000")
    xor4(a, GI, NGI, "0x80008000"); xor4(a, GI + 4, NGI + 4, "0x80008000")
    a("v_bfe_u32 v5, v10, 1, 3\nv_xor_b32 v5, v5, v11\nv_lshlrev_b32 v5, 3, v5\nv_lshl_add_u32 v6, v12, 6, v5\nv_xor_b32 v7, 32, v6")
    RA = 140
    a("v_lshrrev_b32 v5, 2, v10\nv_lshl_add_u32 v8, v11, 3, v5\nv_lshlrev_b32 v8, 6, v8")
    a("v_lshrrev_b32 v5, 1, v5\nv_and_b32 v9, 1, v11\nv_lshl_or_b32 v5, v9, 2, v5\nv_and_b32 v9, 3, v10\nv_xor_b32 v5, v5, v9\nv_lshl_add_u32 v8, v5, 3, v8")
    a(f"v_mov_b32 v{RA}, v8\nv_xor_b32 v{RA+1}, 16, v8\nv_add_u32 v{RA+1}, 256, v{RA+1}\nv_xor_b32 v{RA+2}, 32, v{RA}\nv_xor_b32 v{RA+3}, 32, v{RA+1}")
    a(f"s_lshr_b32 s27, s2, 2\ns_and_b32 s27, s27, 3\nv_xor_b32 v5, s27, v11\nv_mul_u32_u24 v13, {2*ZT_STRIDE}, v12\nv_lshl_add_u32 v13, v5, 4, v13")
    a(f"s_lshl_b32 s28, s2, 6\ns_add_u32 s29, s28, {ZT_STRIDE}")
    Y = 144
    Z = 160
    P = 176
    def pack(src):
        for t in range(2):
            for pl in range(2):
                y = src + 8 * t + 4 * pl
                a(f"v_cvt_pk_bf16_f32 v{P+4*pl+2*t}, v{y}, v{y+1}")
                a(f"v_cvt_pk_bf16_f32 v{P+4*pl+2*t+1}, v{y+2}, v{y+3}")
    for t in range(2):
        a(f"s_waitcnt vmcnt({6-4*t})")
        yr, yi = Y + 8 * t, Y + 8 * t + 4
        for kk in range(2):
            xr, xi = X + 16 * t + 8 * kk, X + 16 * t + 8 * kk + 4
            mfma(a, yr, xr, FR + 4 * kk, yr if kk else None)
            mfma(a, yi, xr, FI + 4 * kk, yi if kk else None)
            mfma(a, yr, xi, NFI + 4 * kk, yr)
            mfma(a, yi, xi, FR + 4 * kk, yi)
    for t in range(2):
        for j in range(4): cmul(a, Y + 8 * t + j, Y + 8 * t + 4 + j, TWR + 4 * t + j, TWI + 4 * t + j, 5, conj=True)
    pack(Y)
    for t in range(2):
        mfma(a, Z + 8 * t, GR + 4 * t, P); mfma(a, Z + 8 * t + 4, GR + 4 * t, P + 4)
    for t in range(2):
        mfma(a, Z + 8 * t, NGI + 4 * t, P + 4, Z + 8 * t); mfma(a, Z + 8 * t + 4, GI + 4 * t, P, Z + 8 * t + 4)
    a("s_waitcnt vmcnt(0)")
    WU = 16
    unpack(a, WU, W, 8)
    for t in range(2):
        for j in range(4): cmul(a, Z + 8 * t + j, Z + 8 * t + 4 + j, WU + 8 * t + 2 * j, WU + 8 * t + 2 * j + 1, 5)
    pack(Z)
    for t in range(2):
        mfma(a, Y + 8 * t, GR + 4 * t, P); mfma(a, Y + 8 * t + 4, GR + 4 * t, P + 4)
    for t in range(2):
        mfma(a, Y + 8 * t, GI + 4 * t, P + 4, Y + 8 * t); mfma(a, Y + 8 * t + 4, NGI + 4 * t, P, Y + 8 * t + 4)
    for t in range(2):
        for j in range(4): cmul(a, Y + 8 * t + j, Y + 8 * t + 4 + j, TWR + 4 * t + j, TWI + 4 * t + j, 5)
        for pl in range(2):
            y = Y + 8 * t + 4 * pl
            a(f"v_cvt_pk_bf16_f32 v{y}, v{y}, v{y+1}\nv_cvt_pk_bf16_f32 v{y+1}, v{y+2}, v{y+3}")
            a(f"ds_write_b64 v{6+t}, v[{y}:{y+1}] offset:{pl*4096}")
    a("s_waitcnt lgkmcnt(0)\ns_barrier")
    for t in range(2):
        for kk in range(2):
            for pl in range(2):
                for q in range(2):
                    d = X + 16 * t + 8 * kk + 4 * pl + 2 * q
                    a(f"ds_read_b64_tr_b16 v[{d}:{d+1}], v{RA+2*t+q} offset:{pl*4096+kk*2048}")
    for t in range(2):
        ur, ui = Z + 8 * t, Z + 8 * t + 4
        for kk in range(2):
            a(f"s_waitcnt lgkmcnt({12-8*t-4*kk})")
            xr, xi = X + 16 * t + 8 * kk, X + 16 * t + 8 * kk + 4
            mfma(a, ur, xr, FR + 4 * kk, ur if kk else None)
            mfma(a, ui, xr, NFI + 4 * kk, ui if kk else None)
            mfma(a, ur, xi, FI + 4 * kk, ur)
            mfma(a, ui, xi, FR + 4 * kk, ui)
    for t in range(2):
        for pl in range(2):
            y = Z + 8 * t + 4 * pl
            a(f"v_cvt_pk_bf16_f32 v{P+4*t+2*pl}, v{y}, v{y+1}\nv_cvt_pk_bf16_f32 v{P+4*t+2*pl+1}, v{y+2}, v{y+3}")
        a(f"buffer_store_dwordx4 v[{P+4*t}:{P+4*t+3}], v13, s[16:19], s{28+t} offen")
    a("K2_END:\ns_endpgm")
    return head(name) + a.finish() + "\n", kd(name, 184, 184), f"; @launch kernel={name} grid=(289,1,1) block=(256,1,1) lds=8192"
```

```python
from common import *
from k1 import load_row3
ZR = 19456
YB = 19712
def k3(name="k3_kernel"):
    a = Asm()
    a("s_cmp_ge_u32 s2, 128\ns_cbranch_scc1 K3_END")
    a(f"s_load_dwordx2 s[4:5], s[0:1], {KA_X}\ns_load_dwordx2 s[40:41], s[0:1], {KA_WS}")
    a("v_lshrrev_b32 v1, 6, v0\nv_and_b32 v2, 63, v0\nv_and_b32 v3, 31, v0\nv_lshrrev_b32 v4, 5, v0")
    a("v_readfirstlane_b32 s21, v1")
    a(f"s_mul_i32 s24, s2, {16*1152}\ns_mul_i32 s25, s2, {ZT_STRIDE}")
    a("v_lshlrev_b32 v8, 4, v3\nv_lshlrev_b32 v9, 2, v3\nv_add_u32 v9, 1024, v9")
    a("v_mul_u32_u24 v5, 1152, v4\nv_add_u32 v6, v5, v8\nv_add_u32 v7, v5, v9")
    a("v_lshlrev_b32 v12, 4, v2")
    a("s_lshl_b32 s26, s21, 10\ns_add_u32 s25, s25, s26\ns_mov_b32 m0, s26")
    a("s_waitcnt lgkmcnt(0)")
    srd(a, 44, 40, WS_ZT, SZ_ZT)
    a("buffer_load_dwordx4 v12, s[44:47], s25 offen lds")
    a("s_add_u32 m0, s26, 8192\ns_add_u32 s27, s25, 8192")
    a("buffer_load_dwordx4 v12, s[44:47], s27 offen lds")
    a("s_cmp_ge_u32 s21, 3\ns_cbranch_scc1 K3_A")
    a("s_add_u32 m0, s26, 16384\ns_add_u32 s27, s25, 16384")
    a("buffer_load_dwordx4 v12, s[44:47], s27 offen lds")
    a("K3_A:")
    srd(a, 8, 4, 0, SZ_X); srd(a, 12, 40, WS_MOD, 6912); srd(a, 16, 40, WS_X1, SZ_X); srd(a, 48, 40, WS_H2, SZ_X)
    XP, GAP, SBP, C1P = 16, 26, 36, 46
    load_row3(a, XP, 6, 8, "s24")
    a("s_movk_i32 s27, 2304\ns_movk_i32 s28, 3456\ns_movk_i32 s29, 4608")
    load_row3(a, GAP, 8, 12, "s27"); load_row3(a, SBP, 8, 12, "s28"); load_row3(a, C1P, 8, 12, "s29")
    a(f"v_mov_b32 v56, 0\nv_mov_b32 v57, 0\nv_mov_b32 v58, 0\nv_mov_b32 v59, 0\nv_mov_b32 v5, {ZR}\nds_write_b128 v5, v[56:59]")
    a("v_and_b32 v10, 15, v2\nv_lshrrev_b32 v11, 4, v2")
    a("s_and_b32 s22, s21, 1\ns_lshr_b32 s23, s21, 1")
    RA = 56; T = 96
    a("v_lshrrev_b32 v5, 2, v10\nv_lshl_add_u32 v5, v11, 2, v5")
    a(f"v_and_b32 v13, 3, v10\nv_mov_b32 v{T+3}, {ZR}")
    a(f"v_mul_u32_u24 v{T}, 18, v5\nv_add_u32 v{T}, v{T}, v13")
    for mu in range(3):
        for q in range(2):
            r = RA + 2 * mu + q
            if q == 0: a(f"v_add_u32 v{T+1}, {4*mu}, v{T}")
            else: a(f"v_sub_u32 v{T+1}, {288-4*mu}, v{T}")
            a(f"v_bfe_u32 v{T+2}, v{T+1}, 2, 2\nv_xor_b32 v{T+2}, s23, v{T+2}\nv_lshlrev_b32 v{T+2}, 4, v{T+2}\nv_lshl_add_u32 v{r}, v{T+1}, 6, v{T+2}")
            if mu == 0 and q == 1:
                a("v_cmp_eq_u32 vcc, 0, v13\nv_cmp_le_u32 s[30:31], 1, v5\ns_and_b64 vcc, vcc, s[30:31]")
                a(f"v_cndmask_b32 v{r}, v{r}, v{T+3}, vcc")
            if mu == 2:
                a(f"v_cmp_le_u32 vcc, {2-q}, v13\nv_cndmask_b32 v{r}, v{r}, v{T+3}, vcc")
    GR, GI, G2, G3 = 64, 68, 72, 76
    TWR, TWI = 80, 83
    E = 88
    f32_consts(a, 10, 11, GR, GI, T)
    a("s_lshl_b32 s30, s22, 31")
    xor4(a, GR, GR, "s30"); xor4(a, GI, GI, "s30")
    for i in range(4):
        if i < 2:
            a(f"v_xor_b32 v{G2+i}, 0x80008000, v{GI+i}\nv_mov_b32 v{G3+i}, v{GR+i}")
        else:
            a(f"v_mov_b32 v{G2+i}, v{GI+i}\nv_xor_b32 v{G3+i}, 0x80008000, v{GR+i}")
    a("s_lshl_b32 s30, s22, 4\nv_add_u32 v14, s30, v10")
    for mu in range(3):
        a(f"v_add_u32 v{T}, {4*mu}, v11\nv_mul_u32_u24 v{T}, v{T}, v14")
        sincos(a, TWR + mu, TWI + mu, T, 1.0 / 576, T + 1)
    for i in range(6): a(f"v_mul_f32 v{TWR+i}, {f2u(2.0/576)}, v{TWR+i}")
    for tau in range(2):
        a(f"v_add_u32 v{T+4}, {16*tau}, v10")
        for mu in range(3):
            a(f"v_add_u32 v{T}, {4*mu}, v11\nv_mul_u32_u24 v{T}, v{T}, v{T+4}")
            sincos(a, T + 2, T + 3, T, 1.0 / 18, T + 1)
            a(f"v_cvt_pk_bf16_f32 v{E+4*tau+mu}, v{T+2}, -v{T+3}")
        a(f"v_cmp_gt_u32 vcc, 2, v11\nv_cndmask_b32 v{E+4*tau+2}, 0, v{E+4*tau+2}, vcc\nv_mov_b32 v{E+4*tau+3}, 0")
    a("v_lshrrev_b32 v5, 1, v11\ns_lshl_b32 s30, s22, 1\nv_add_u32 v5, s30, v5\nv_bfe_u32 v62, v10, 1, 2\nv_xor_b32 v5, v5, v62\nv_lshlrev_b32 v5, 4, v5")
    a(f"v_lshl_add_u32 v62, v10, 6, v5\nv_and_b32 v5, 1, v11\nv_lshl_add_u32 v62, v5, 3, v62\ns_mul_i32 s30, s23, {4*1152}\ns_add_u32 s30, s30, {YB}\nv_add_u32 v62, s30, v62")
    a("v_bfe_u32 v5, v3, 3, 2\nv_and_b32 v63, 3, v3\nv_xor_b32 v5, v5, v63\nv_lshlrev_b32 v5, 4, v5\nv_lshrrev_b32 v63, 2, v3\nv_lshl_add_u32 v63, v63, 6, v5")
    a(f"v_mul_u32_u24 v5, 1152, v4\nv_add_u32 v5, {YB}, v5\nv_add_u32 v63, v63, v5\nv_add_u32 v15, v9, v5")
    A = 96
    TT = 120
    P = 144
    Yv = 96
    for j in range(4): a(f"v_mov_b32 v{P+4*j+3}, 0")
    a("s_waitcnt vmcnt(12) lgkmcnt(0)\ns_barrier")
    for mu in range(3):
        for pl in range(2):
            for q in range(2):
                d = A + 8 * mu + 4 * pl + 2 * q
                a(f"ds_read_b64_tr_b16 v[{d}:{d+1}], v{RA+2*mu+q} offset:{8*pl}")
    for mu in range(3):
        a(f"s_waitcnt lgkmcnt({8-4*mu})")
        ar_, ai_ = A + 8 * mu, A + 8 * mu + 4
        tr, ti = TT + 8 * mu, TT + 8 * mu + 4
        mfma(a, tr, ar_, GR); mfma(a, ti, ar_, GI); mfma(a, tr, ai_, G2, tr); mfma(a, ti, ai_, G3, ti)
    for mu in range(3):
        for j in range(4):
            cmul(a, TT + 8 * mu + j, TT + 8 * mu + 4 + j, TWR + mu, TWI + mu, 5)
            a(f"v_cvt_pk_bf16_f32 v{P+4*j+mu}, v{TT+8*mu+j}, v{TT+8*mu+4+j}")
    for j in range(4):
        for tau in range(2): mfma(a, Yv + 8 * j + 4 * tau, P + 4 * j, E + 4 * tau)
    for j in range(4):
        for tau in range(2):
            y = Yv + 8 * j + 4 * tau
            a(f"v_cvt_pk_bf16_f32 v{y}, v{y}, v{y+1}\nv_cvt_pk_bf16_f32 v{y+1}, v{y+2}, v{y+3}")
        a(f"ds_write_b64 v62, v[{Yv+8*j}:{Yv+8*j+1}] offset:{j*1152}")
    a("s_mov_b32 exec_lo, 0x00030003\ns_mov_b32 exec_hi, 0x00030003")
    for j in range(4):
        a(f"ds_write_b64 v62, v[{Yv+8*j+4}:{Yv+8*j+5}] offset:{j*1152+1024}")
    a("s_mov_b64 exec, -1")
    a("v_lshlrev_b32 v56, 8, v3\nv_lshl_add_u32 v56, v4, 4, v56")
    a("v_lshrrev_b32 v57, 2, v3\nv_lshlrev_b32 v57, 8, v57\nv_lshl_add_u32 v57, v4, 4, v57\nv_and_b32 v5, 3, v3\nv_lshl_add_u32 v57, v5, 2, v57\nv_add_u32 v57, 16384, v57")
    a("s_mul_i32 s26, s2, 18432\ns_add_u32 s27, s26, 8192")
    X, YU, GA = 96, 114, 132
    a("s_waitcnt vmcnt(6)")
    unpack(a, X, XP, 9); unpack(a, GA, GAP, 9)
    a("s_waitcnt lgkmcnt(0)\ns_barrier")
    a(f"ds_read_b128 v[64:67], v63\nds_read_b128 v[68:71], v63 offset:512\nds_read_b32 v72, v15")
    a("s_waitcnt lgkmcnt(0)")
    unpack(a, YU, 64, 9)
    for i in range(18): a(f"v_fmac_f32 v{X+i}, v{GA+i}, v{YU+i}")
    for i in range(9): a(f"v_cvt_pk_bf16_f32 v{XP+i}, v{X+2*i}, v{X+2*i+1}")
    a(f"buffer_store_dwordx4 v[{XP}:{XP+3}], v6, s[16:19], s24 offen\nbuffer_store_dwordx4 v[{XP+4}:{XP+7}], v6, s[16:19], s24 offen offset:512\nbuffer_store_dword v{XP+8}, v7, s[16:19], s24 offen")
    unpack(a, X, XP, 9)
    layernorm18(a, X, 150)
    a("s_waitcnt vmcnt(3)")
    unpack(a, YU, SBP, 9); unpack(a, GA, C1P, 9)
    for i in range(18): a(f"v_fma_f32 v{X+i}, v{X+i}, v{GA+i}, v{YU+i}")
    for i in range(9): a(f"v_cvt_pk_bf16_f32 v{64+i}, v{X+2*i}, v{X+2*i+1}")
    a("buffer_store_dwordx4 v[64:67], v56, s[48:51], s26 offen\nbuffer_store_dwordx4 v[68:71], v56, s[48:51], s27 offen\nbuffer_store_dword v72, v57, s[48:51], s26 offen")
    a("K3_END:\ns_endpgm")
    return head(name) + a.finish() + "\n", kd(name, 160, 160), f"; @launch kernel={name} grid=(128,1,1) block=(512,1,1) lds={YB+18432}"
```

```python
from common import *
H = 16
ACC = [88, 120]
STG = 152
VA = 168
VB = 172
VN = 176
VO_GU, VO_N, VO_D, VO_ST, VO_H = 180, 181, 182, 183, 184
TG = 188
FR = 144
S_G, S_U, S_N, S_D, S_P, S_H = 8, 12, 16, 44, 48, 52
sW1K, sSO, sFULL, sNAR, sDRW, sDL8, sST, sRD, sDM, sCNT, sT, sST2, sCOL = 22, 23, 24, 25, 26, 27, 28, 29, 30, 31, 32, 33, 34
RING = 147456; UNIT = 36864

def k4(name="k4_kernel", xs=4, fine_units=3, st_flags="sc1", loop_d=True):
    a = Asm()
    a("s_cmp_ge_u32 s2, 256\ns_cbranch_scc1 K4_END")
    a(f"s_load_dwordx4 s[4:7], s[0:1], {KA_WG}\ns_load_dwordx2 s[36:37], s[0:1], {KA_WD}\ns_load_dwordx2 s[40:41], s[0:1], {KA_WS}")
    a("v_lshrrev_b32 v1, 6, v0\nv_and_b32 v2, 63, v0")
    a("v_readfirstlane_b32 s21, v1")
    lg = {2: 1, 4: 2, 8: 3, 16: 4, 1: 0}[xs]
    ng = 16 // xs
    a(f"s_and_b32 s38, s2, 7\ns_lshr_b32 s39, s2, 3")
    if ng <= 8:
        lgn = ng.bit_length() - 1
        a(f"s_and_b32 s42, s38, {ng-1}\ns_lshl_b32 s42, s42, {lg}\ns_and_b32 s43, s39, {xs-1}\ns_add_u32 s42, s42, s43")
        a(f"s_lshr_b32 s43, s38, {lgn}\ns_lshl_b32 s43, s43, {5-lg}\ns_lshr_b32 s39, s39, {lg}\ns_add_u32 s43, s43, s39")
    a(f"s_lshl_b32 s{sW1K}, s21, 10")
    a(f"s_and_b32 s38, s42, 1\ns_mul_i32 s39, s42, 576\ns_lshl_b32 s{sT}, s38, 6\ns_add_u32 s{sFULL}, s39, s{sT}")
    a(f"s_xor_b32 s{sT}, s38, 1\ns_lshl_b32 s{sT}, s{sT}, 9\ns_add_u32 s{sNAR}, s39, s{sT}")
    a(f"s_mul_i32 s{sDRW}, s{sFULL}, 576")
    a(f"s_mul_i32 s{sDL8}, s38, {-288*1152 & 0xffffffff}\ns_add_u32 s{sDL8}, s{sDL8}, {32*1152}")
    a("v_lshrrev_b32 v3, 3, v2\nv_bfe_u32 v4, v2, 4, 1\nv_and_b32 v5, 1, v1\nv_lshl_or_b32 v4, v5, 1, v4\nv_bfe_u32 v5, v2, 1, 2\nv_xor_b32 v4, v4, v5")
    a("v_lshlrev_b32 v4, 5, v4\nv_and_b32 v5, 1, v2\nv_lshl_add_u32 v4, v5, 4, v4")
    a(f"v_lshl_add_u32 v5, v1, 3, v3\nv_mul_u32_u24 v5, 9216, v5\nv_add_u32 v{VO_GU}, v5, v4")
    a(f"v_lshrrev_b32 v5, 5, v2\nv_lshlrev_b32 v5, 4, v5\nv_lshl_add_u32 v5, v1, 2, v5\nv_and_b32 v6, 3, v3\nv_add_u32 v5, v5, v6\nv_mul_u32_u24 v5, 1152, v5\nv_add_u32 v{VO_D}, v5, v4")
    a("v_bfe_u32 v4, v2, 4, 1\nv_and_b32 v5, 1, v1\nv_lshl_or_b32 v5, v5, 1, v4\nv_lshlrev_b32 v5, 3, v5\nv_lshrrev_b32 v6, 5, v2\nv_lshl_add_u32 v5, v6, 2, v5\nv_bfe_u32 v6, v2, 2, 2\nv_add_u32 v5, v5, v6")
    a(f"v_mul_u32_u24 v5, 9216, v5\nv_bfe_u32 v6, v2, 1, 1\nv_xor_b32 v6, v6, v4\nv_lshl_add_u32 v5, v6, 5, v5\nv_and_b32 v6, 1, v2\nv_lshl_add_u32 v{VO_N}, v6, 4, v5")
    a(f"v_lshlrev_b32 v{VO_H}, 4, v2\nv_mul_u32_u24 v5, 36864, v1\nv_add_u32 v{VO_ST}, v5, v{VO_H}")
    a("s_waitcnt lgkmcnt(0)")
    srd(a, S_G, 4, 0, D * F * 2)
    srd(a, S_H, 40, WS_H2, SZ_X)
    a(f"s_lshl_b32 s38, s43, 3\ns_lshl_b32 s39, s21, 1\ns_add_u32 s38, s38, s39\ns_mul_i32 s38, s38, 18432\ns_add_u32 s39, s38, 18432")
    a(f"s_mov_b32 s{sSO}, s{sFULL}")
    vm = []
    units = []
    for b in range(4): units += [("G", b, 0), ("G", b, 1), ("U", b, 0), ("U", b, 1)]
    units += [("N", 0, 0), ("N", 0, 1)] + [("D", i, 0) for i in range(9)] + [("X", i, 0) for i in range(3)]
    def dma_parts(kap, dyn=False):
        u, ks = divmod(kap, 9)
        ty, b, hf = units[u]
        pre = []
        if ks == 0 and hf == 0 and kap:
            if ty == "G": pre = [f"s_add_u32 s{sSO}, s{sFULL}, {128*b}"]
            if ty == "U": pre = [f"s_add_u32 s{sSO}, s{sFULL}, {128*b}"]
            if ty == "N": pre = [f"s_mov_b32 s{sSO}, s{sNAR}"]
            if ty in "DX":
                if dyn: pre = [f"s_add_u32 s{sCOL}, s{sCOL}, 128", f"s_mov_b32 s{sSO}, s{sCOL}"]
                else: pre = [f"s_add_u32 s{sSO}, s{sDRW}, {128*b}"]
        m0 = f"s_add_u32 m0, s{sDM}, {ks*4096}" if dyn else f"s_add_u32 m0, s{sW1K}, {(kap%36)*4096}"
        sd, vo = {"G": (S_G, VO_GU), "U": (S_U, VO_GU), "N": (S_N, VO_N), "D": (S_D, VO_D), "X": (S_D, VO_D)}[ty]
        dma = f"buffer_load_dwordx4 v{vo}, s[{sd}:{sd+3}], s{sSO} offen lds"
        if ty in "DX":
            post = [f"s_add_u32 s{sSO}, s{sSO}, s{sDL8}"] if ks == 7 else ([] if ks == 8 else [f"s_add_u32 s{sSO}, s{sSO}, {32*1152}"])
        else:
            post = [] if (ks == 8 and hf == 1) else [f"s_add_u32 s{sSO}, s{sSO}, {32*9216}"]
        return pre, m0, dma, post
    def emit_dma(kap):
        pre, m0, dma, post = dma_parts(kap)
        for x in pre: a(x)
        a(m0); a(dma); vm.append(("D", kap))
        for x in post: a(x)
    for j in range(6):
        for k in range(3): emit_dma(3 * j + k)
        for k in range(3):
            ks = 3 * j + k
            for rt in range(2):
                r = (rt * 18 + ks) * 4
                a(f"buffer_load_dwordx4 a[{r}:{r+3}], v{VO_H}, s[{S_H}:{S_H+3}], s{38+rt} offen offset:{(ks%4)*1024}")
                vm.append(("H", ks))
            if ks % 4 == 3: a("s_add_u32 s38, s38, 4096\ns_add_u32 s39, s39, 4096")
        if j == 0:
            srd(a, S_U, 6, 0, D * F * 2)
    for kap in range(18, 27): emit_dma(kap)
    a(f"s_cmp_ge_u32 s21, 2\ns_cselect_b32 s{S_N}, s6, s4\ns_cselect_b32 s{S_N+1}, s7, s5\ns_mov_b32 s{S_N+2}, {D*F*2}\ns_mov_b32 s{S_N+3}, 0x20000")
    srd(a, S_D, 36, 0, D * F * 2)
    srd(a, S_P, 40, WS_PART, SZ_PART)
    a(f"s_lshl_b32 s38, s43, 4\ns_add_u32 s38, s38, s42\ns_mul_i32 s{sST}, s38, 147456\ns_add_u32 s{sST2}, s{sST}, 18432")
    a("v_lshrrev_b32 v3, 4, v2\nv_bfe_u32 v4, v2, 2, 2\nv_and_b32 v5, 3, v2")
    a("v_lshl_add_u32 v6, v3, 3, v4\nv_lshlrev_b32 v6, 7, v6\nv_lshl_add_u32 v6, v5, 3, v6")
    a("v_lshrrev_b32 v7, 1, v4\nv_and_b32 v8, 1, v3\nv_lshl_or_b32 v7, v8, 1, v7\nv_lshl_add_u32 v6, v7, 5, v6")
    for g in range(4): a(f"v_xor_b32 v{VB+g}, {32*g}, v6\nv_mov_b32 v{VA+g}, v{VB+g}")
    a("v_lshrrev_b32 v6, 1, v3\nv_lshlrev_b32 v6, 10, v6\nv_lshl_add_u32 v7, v8, 2, v4\nv_lshl_add_u32 v6, v7, 6, v6\nv_lshl_add_u32 v6, v8, 5, v6\nv_lshl_add_u32 v6, v5, 3, v6")
    a(f"v_mov_b32 v{VN}, v6\nv_add_u32 v{VN+1}, 2048, v6\nv_xor_b32 v{VN+2}, 32, v6\nv_xor_b32 v{VN+3}, 32, v{VN+1}")
    def vmwait(pred):
        idx = max(i for i, t in enumerate(vm) if pred(t))
        return min(63, len(vm) - 1 - idx)
    def reads(n):
        u, g = divmod(n, 12); ss, gam = divmod(g, 4)
        out = []
        for k in range(3):
            for q in range(2):
                r = FR + (n % 3) * 12 + 4 * k + 2 * q
                out.append(f"ds_read_b64_tr_b16 a[{r}:{r+1}], v{VA+gam} offset:{(3*ss+k)*4096+q*512}")
        return out
    a(f"s_waitcnt vmcnt({vmwait(lambda t: t == ('D', 2))})\ns_barrier")
    for x in reads(0) + reads(1): a(x)
    a(f"s_waitcnt vmcnt({vmwait(lambda t: t == ('H', 2))})\ns_waitcnt lgkmcnt(6)")

    NU = 27
    gap_of = lambda u, g, k: u * 72 + g * 6 + k
    tasks = []
    def task(e, l, txt, deps=()):
        tasks.append([e, l, txt, list(deps), None]); return tasks[-1]
    def accr(u, gam, rt):
        ty = units[u][0]
        return ACC[0 if ty in "GN" else 1] + 8 * gam + 4 * rt
    for u, (ty, b, hf) in enumerate(units[:NU]):
        done = lambda gam: gap_of(u, 8 + gam, 5) + 4
        if ty == "G" and hf == 1:
            for gam in range(4):
                for e in range(8):
                    task(done(gam), gap_of(u + 2, 7, 0), f"v_max_f32 v{TG+8*gam+e}, 0, v{ACC[0]+8*gam+e}")
        if ty == "U" and hf == 1:
            for gam in range(4):
                mu = [task(done(gam), gap_of(u + 2, 5, 0), f"v_mul_f32 v{ACC[1]+8*gam+e}, v{TG+8*gam+e}, v{ACC[1]+8*gam+e}") for e in range(8)]
                for rt in range(2):
                    for h in range(2):
                        s_ = ACC[1] + 8 * gam + 4 * rt + 2 * h
                        d_ = H + 8 * (2 * b + gam // 2) + 4 * rt + 2 * (gam & 1) + h
                        task(done(gam), gap_of(u + 2, 5, 0), f"v_cvt_pk_bf16_f32 v{d_}, v{s_}, v{s_+1}", mu[4*rt+2*h:4*rt+2*h+2])
        if ty == "N" and hf == 1:
            dl = gap_of(u + 1, 7, 4)
            for uu in range(2):
                mx = [task(done(2 * uu), dl, f"v_max_f32 v{ACC[0]+16*uu+e}, 0, v{ACC[0]+16*uu+e}") for e in range(8)]
                mu = [task(done(2 * uu + 1), dl, f"v_mul_f32 v{ACC[0]+16*uu+e+8}, v{ACC[0]+16*uu+e}, v{ACC[0]+16*uu+e+8}", [mx[e]]) for e in range(8)]
                for rt in range(2):
                    for h in range(2):
                        s_ = ACC[0] + 16 * uu + 8 + 4 * rt + 2 * h
                        task(done(2 * uu + 1), dl, f"v_cvt_pk_bf16_f32 v{H+64+4*rt+2*uu+h}, v{s_}, v{s_+1}", mu[4*rt+2*h:4*rt+2*h+2])
        if ty == "D":
            for gam in range(4):
                for rt in range(2):
                    for h in range(2):
                        s_ = ACC[1] + 8 * gam + 4 * rt + 2 * h
                        d_ = STG + 8 * (gam // 2) + 4 * rt + 2 * (gam & 1) + h
                        task(done(gam), done(gam) + 12, f"v_cvt_pk_bf16_f32 v{d_}, v{s_}, v{s_+1}")
        if u + 1 < NU:
            base = VN if units[u + 1][0] == "N" else VB
            dyn = loop_d and units[u][0] == "D" and units[u][1] >= 1
            for gam in range(4):
                src = f"s{sRD}" if dyn else str(((u + 1) % 4) * UNIT)
                task(gap_of(u, 7 + gam, 0), gap_of(u, 9 + gam, 4) if gam < 3 else gap_of(u, 11, 4), f"v_add_u32 v{VA+gam}, {src}, v{base+gam}")
    vslot = {}
    def vcap(gp):
        k = gp % 6; u = gp // 72
        if u >= NU: return 99
        if k in (0, 1, 3, 4): return 1
        return 0
    for t in sorted(tasks, key=lambda t: t[1]):
        gp = max([t[0]] + [d[4] for d in t[3]])
        while len(vslot.get(gp, [])) >= vcap(gp): gp += 1
        assert gp <= t[1], (t, gp)
        t[4] = gp
        vslot.setdefault(gp, []).append(t[2])
    def stores(u):
        out = {}
        pos = {(0, 0): gap_of(u + 1, 0, 2), (0, 1): gap_of(u + 1, 4, 2), (1, 0): gap_of(u + 1, 4, 4), (1, 1): gap_of(u + 1, 8, 2)}
        return pos
    st_at = {}
    for u in range(18, NU):
        for (p, rt), gp in {(0, 0): gap_of(u + 1, 1, 4), (0, 1): gap_of(u + 1, 2, 4), (1, 0): gap_of(u + 1, 4, 2), (1, 1): gap_of(u + 1, 5, 4)}.items():
            r = STG + 8 * p + 4 * rt
            st_at[gp] = f"buffer_store_dwordx4 v[{r}:{r+3}], v{VO_ST}, s[{S_P}:{S_P+3}], s{sST2 if rt else sST} offen offset:{p*1024} {st_flags}".strip()

    a.strict = True
    body = {}
    for u in range(NU):
        ty, b, hf = units[u]
        dyn = loop_d and ty == "D" and b >= 1
        lines = []
        sq = []
        for g in range(12):
            ss, gam = divmod(g, 4)
            n = u * 12 + g
            rd = reads(n + 2) if n + 2 < NU * 12 else []
            j = u * 3 + ss
            sc = {0: [], 1: [], 3: [], 4: []}
            mid = None
            if gam == 0:
                fine = u < fine_units
                if fine or ss == 0:
                    upto = (j + 1 if (fine and not (u == fine_units - 1 and False)) else j + 3)
                    if fine and u + 1 == fine_units and ss == 2: upto = j + 1
                    need_k = min(3 * upto + 2, NU * 9 - 1)
                    mid = ("B", need_k)
            else:
                kap = 3 * (j + 9) + gam - 1
                pre, m0, dma, post = dma_parts(kap, dyn)
                sc[0] += pre; sc[1].append(m0); sc[3] += post
                mid = ("D", dma, kap)
            if dyn or (loop_d and ty == "D" and b == 0):
                pass
            if ty == "D" and loop_d:
                if g == 0 and dyn:
                    sc[3] += [f"s_add_u32 s{sDM}, s{sDM}, {UNIT}"]
                    sc[4] += [f"s_cmp_ge_u32 s{sDM}, {RING}"]
                    sc[0] += []
                if g == 8 and b >= 0:
                    pass
            for k in range(6):
                rt, kk = divmod(k, 3)
                ks = (9 * hf + 3 * ss + kk) if ty in "GUN" else 3 * ss + kk
                acc = accr(u, gam, rt)
                first = (ss == 0 and kk == 0 and (hf == 0 or ty == "D"))
                A = FR + (n % 3) * 12 + 4 * kk
                if ty in "GUN": B = f"a[{(rt*18+ks)*4}:{(rt*18+ks)*4+3}]"
                else: B = f"v[{H+8*ks+4*rt}:{H+8*ks+4*rt+3}]"
                lines.append(f"v_mfma_f32_16x16x32_bf16 v[{acc}:{acc+3}], a[{A}:{A+3}], {B}, " + ("0" if first else f"v[{acc}:{acc+3}]"))
                gp = gap_of(u, g, k)
                if k == 2:
                    if mid and mid[0] == "B": lines.append("s_barrier")
                    elif mid: lines.append(mid[1]); vm.append(("D", mid[2]))
                    elif gp in st_at: lines.append(st_at[gp]); vm.append(("S", gp))
                    continue
                if k == 5:
                    if rd or n + 1 < NU * 12:
                        lines.append(f"s_waitcnt lgkmcnt({4 if rd else 0})")
                    lines += rd[4:6]
                    continue
                s_ = list(sc[k])
                if k == 1 and mid and mid[0] == "B":
                    s_.append(("VM", mid[1]))
                if k == 4 and gam == 3 and j < 5:
                    s_.append(("HW", 3 * (j + 1) + 2))
                for x in s_:
                    if isinstance(x, tuple):
                        if x[0] == "VM": lines.append(("VMW", vmwait(lambda t: t == ("D", x[1]))))
                        else: lines.append(("VMW", vmwait(lambda t: t == ("H", x[1]))))
                    else: lines.append(x)
                ri = {0: 0, 1: 1, 3: 2, 4: 3}[k]
                if rd: lines.append(rd[ri])
                lines += vslot.get(gp, [])
                if gp in st_at: lines.append(st_at[gp]); vm.append(("S", gp))
            if ty == "D" and g == 6 and b >= 1:
                lines.append(f"s_add_u32 s{sST}, s{sST}, 2048"); lines.append(f"s_add_u32 s{sST2}, s{sST2}, 2048")
        body[u] = lines
    def put(lines, mins=None):
        i = 0
        for x in lines:
            if isinstance(x, tuple):
                a(f"s_waitcnt vmcnt({x[1] if mins is None else mins[i]})"); i += 1
            else: a(x)
    assert not loop_d
    for u in range(NU):
        if u == 24: a(f"s_mov_b32 s{S_D+2}, 0")
        put(body[u])
    a.strict = False
    for gp in sorted(vslot):
        if gp >= NU * 72:
            for x in vslot[gp]: a(x)
    for gp in sorted(st_at):
        if gp >= NU * 72: a(st_at[gp])
    a("K4_END:\ns_endpgm")
    return head(name) + a.finish() + "\n", kd(name, 256 + 184, 256), f"; @launch kernel={name} grid=(256,1,1) block=(256,1,1) lds={RING}"
```

```python
from common import *
def k5(name="k5_kernel"):
    a = Asm()
    a("s_cmp_ge_u32 s2, 256\ns_cbranch_scc1 K5_END")
    a(f"s_load_dwordx2 s[4:5], s[0:1], {KA_OUT}\ns_load_dwordx2 s[40:41], s[0:1], {KA_WS}")
    a("v_lshrrev_b32 v1, 6, v0\nv_and_b32 v2, 63, v0\nv_and_b32 v10, 15, v0\nv_bfe_u32 v11, v0, 4, 2")
    a("v_readfirstlane_b32 s21, v1")
    a("s_lshr_b32 s22, s2, 1\ns_and_b32 s23, s2, 1\ns_mul_i32 s23, s23, 9\ns_add_u32 s23, s23, s21")
    a(f"s_lshr_b32 s24, s22, 3\ns_mul_i32 s24, s24, {16*147456}\ns_and_b32 s25, s22, 7\ns_mul_i32 s25, s25, 18\ns_add_u32 s25, s25, s23\ns_lshl_b32 s25, s25, 10\ns_add_u32 s24, s24, s25")
    a("v_lshlrev_b32 v3, 4, v2")
    a("v_mul_u32_u24 v4, 1152, v10\nv_lshl_add_u32 v4, v11, 4, v4\nv_lshlrev_b32 v5, 4, v11")
    a(f"s_mul_i32 s26, s22, {16*1152}\ns_lshl_b32 s27, s23, 6\ns_add_u32 s26, s26, s27\ns_add_u32 s27, s27, 5760")
    a("s_waitcnt lgkmcnt(0)")
    srd(a, 8, 40, WS_PART, SZ_PART)
    Pb = 16
    for f in range(16):
        a(f"buffer_load_dwordx4 v[{Pb+4*f}:{Pb+4*f+3}], v3, s[8:11], s24 offen")
        if f < 15: a("s_add_u32 s24, s24, 147456")
    srd(a, 12, 40, WS_X1, SZ_X); srd(a, 16, 40, WS_MOD, 6912); srd(a, 44, 4, 0, SZ_X)
    a("buffer_load_dwordx4 v[80:83], v4, s[12:15], s26 offen\nbuffer_load_dwordx4 v[84:87], v5, s[16:19], s27 offen")
    A, T = 88, 96
    for f in range(16):
        a(f"s_waitcnt vmcnt({17-f})")
        unpack(a, A if f == 0 else T, Pb + 4 * f, 4)
        if f:
            for e in range(8): a(f"v_add_f32 v{A+e}, v{A+e}, v{T+e}")
    for i in range(4): a(f"v_cvt_pk_bf16_f32 v{16+i}, v{A+2*i}, v{A+2*i+1}")
    a("v_permlane32_swap_b32 v16, v18\nv_permlane32_swap_b32 v17, v19\nv_permlane16_swap_b32 v16, v18\nv_permlane16_swap_b32 v17, v19")
    unpack(a, A, 16, 4)
    a("s_waitcnt vmcnt(0)")
    unpack(a, T, 80, 4); unpack(a, 20, 84, 4)
    for e in range(8): a(f"v_fmac_f32 v{T+e}, v{20+e}, v{A+e}")
    for i in range(4): a(f"v_cvt_pk_bf16_f32 v{16+i}, v{T+2*i}, v{T+2*i+1}")
    a("buffer_store_dwordx4 v[16:19], v4, s[44:47], s26 offen")
    a("K5_END:\ns_endpgm")
    return head(name) + a.finish() + "\n", kd(name, 104, 104), f"; @launch kernel={name} grid=(256,1,1) block=(576,1,1) lds=0"
```

```python
import sys
from k0 import k0
from k1 import k1
from k2 import k2
from k3 import k3
from k4 import k4
from k5 import k5
HDR = open("adaLN_cond__spectral_gfnet__glu_gated_reglu__prompt.s.ref").read().split("; Override launch")[0]
def build(path, parts):
    s = HDR + "\n".join(p[2] for p in parts) + "\n"
    s += '.amdgcn_target "amdgcn-amd-amdhsa--gfx950"\n.text\n'
    s += "".join(p[0] for p in parts)
    s += ".p2align 8\n.fill 256, 4, 0xbf800000\n"
    s += "".join(p[1] for p in parts)
    open(path, "w").write(s)
if __name__ == "__main__":
    out = sys.argv[1] if len(sys.argv) > 1 else "adaLN_cond__spectral_gfnet__glu_gated_reglu__prompt.s"
    build(out, [k0(), k1(), k2(), k3(), k4(loop_d=False), k5()])
```

```python
from build import *
from asmlib import *
def empty(name="e_kernel", grid=256):
    return head(name) + "  s_endpgm\n", kd(name, 8, 8), f"; @launch kernel={name} grid=({grid},1,1) block=(256,1,1) lds=0"
base = [k0(), k1(), k2(), k3(), k4(loop_d=False), k5()]
e = empty()
e2 = ("", "", e[2])
build("v_e4.s", base[:1] + [e] + base[1:2] + [e2] + base[2:3] + [e2] + base[3:4] + [e2] + base[4:])
def pert(delta):
    c, d, l = k5()
    mark = "  v_cvt_pk_bf16_f32 v16, v96, v97"
    i = c.rindex(mark)
    ins = f"  s_cmp_eq_u32 s2, 0\n  s_cselect_b32 s30, {f2u(delta)}, 0\n  v_cmp_eq_u32 vcc, 0, v0\n  v_mov_b32 v30, s30\n  s_nop 1\n  v_cndmask_b32 v30, 0, v30, vcc\n  v_add_f32 v96, v96, v30\n"
    return c[:i] + ins + c[i:], d, l
for i, dl in enumerate((0.012, 0.018, 0.03, 0.06)):
    build(f"v_p{i}.s", base[:5] + [pert(dl)])
```

```python
from common import *
H = 16
ACC = [88, 120]
STG = 152
VA = 168
VB = 172
VN = 176
VO_GU, VO_N, VO_D, VO_ST, VO_H = 180, 181, 182, 183, 184
TG = 188
FR = 144
S_G, S_U, S_N, S_D, S_P, S_H = 8, 12, 16, 44, 48, 52
sW1K, sSO, sFULL, sNAR, sDRW, sDL8, sST, sRD, sDM, sCNT, sT, sST2, sCOL = 22, 23, 24, 25, 26, 27, 28, 29, 30, 31, 32, 33, 34
RING = 147456; UNIT = 36864

def k4(name="k4_kernel", xs=4, fine_units=3, st_flags="sc1", loop_d=True, stamps=None):
    a = Asm()
    nst = [0]
    def stamp():
        if stamps is not None:
            a(f"s_memrealtime s[{56+2*nst[0]}:{57+2*nst[0]}]"); nst[0] += 1
    stamp()
    a("s_cmp_ge_u32 s2, 256\ns_cbranch_scc1 K4_END")
    a(f"s_load_dwordx4 s[4:7], s[0:1], {KA_WG}\ns_load_dwordx2 s[36:37], s[0:1], {KA_WD}\ns_load_dwordx2 s[40:41], s[0:1], {KA_WS}")
    a("v_lshrrev_b32 v1, 6, v0\nv_and_b32 v2, 63, v0")
    a("v_readfirstlane_b32 s21, v1")
    lg = {2: 1, 4: 2, 8: 3, 16: 4, 1: 0}[xs]
    ng = 16 // xs
    a(f"s_and_b32 s38, s2, 7\ns_lshr_b32 s39, s2, 3")
    if ng <= 8:
        lgn = ng.bit_length() - 1
        a(f"s_and_b32 s42, s38, {ng-1}\ns_lshl_b32 s42, s42, {lg}\ns_and_b32 s43, s39, {xs-1}\ns_add_u32 s42, s42, s43")
        a(f"s_lshr_b32 s43, s38, {lgn}\ns_lshl_b32 s43, s43, {5-lg}\ns_lshr_b32 s39, s39, {lg}\ns_add_u32 s43, s43, s39")
    a(f"s_lshl_b32 s{sW1K}, s21, 10")
    a(f"s_and_b32 s38, s42, 1\ns_mul_i32 s39, s42, 576\ns_lshl_b32 s{sT}, s38, 6\ns_add_u32 s{sFULL}, s39, s{sT}")
    a(f"s_xor_b32 s{sT}, s38, 1\ns_lshl_b32 s{sT}, s{sT}, 9\ns_add_u32 s{sNAR}, s39, s{sT}")
    a(f"s_mul_i32 s{sDRW}, s{sFULL}, 576")
    a(f"s_mul_i32 s{sDL8}, s38, {-288*1152 & 0xffffffff}\ns_add_u32 s{sDL8}, s{sDL8}, {32*1152}")
    a("v_lshrrev_b32 v3, 3, v2\nv_bfe_u32 v4, v2, 4, 1\nv_and_b32 v5, 1, v1\nv_lshl_or_b32 v4, v5, 1, v4\nv_bfe_u32 v5, v2, 1, 2\nv_xor_b32 v4, v4, v5")
    a("v_lshlrev_b32 v4, 5, v4\nv_and_b32 v5, 1, v2\nv_lshl_add_u32 v4, v5, 4, v4")
    a(f"v_lshl_add_u32 v5, v1, 3, v3\nv_mul_u32_u24 v5, 9216, v5\nv_add_u32 v{VO_GU}, v5, v4")
    a(f"v_lshrrev_b32 v5, 5, v2\nv_lshlrev_b32 v5, 4, v5\nv_lshl_add_u32 v5, v1, 2, v5\nv_and_b32 v6, 3, v3\nv_add_u32 v5, v5, v6\nv_mul_u32_u24 v5, 1152, v5\nv_add_u32 v{VO_D}, v5, v4")
    a("v_bfe_u32 v4, v2, 4, 1\nv_and_b32 v5, 1, v1\nv_lshl_or_b32 v5, v5, 1, v4\nv_lshlrev_b32 v5, 3, v5\nv_lshrrev_b32 v6, 5, v2\nv_lshl_add_u32 v5, v6, 2, v5\nv_bfe_u32 v6, v2, 2, 2\nv_add_u32 v5, v5, v6")
    a(f"v_mul_u32_u24 v5, 9216, v5\nv_bfe_u32 v6, v2, 1, 1\nv_xor_b32 v6, v6, v4\nv_lshl_add_u32 v5, v6, 5, v5\nv_and_b32 v6, 1, v2\nv_lshl_add_u32 v{VO_N}, v6, 4, v5")
    a(f"v_lshlrev_b32 v{VO_H}, 4, v2\nv_mul_u32_u24 v5, 36864, v1\nv_add_u32 v{VO_ST}, v5, v{VO_H}")
    a("s_waitcnt lgkmcnt(0)")
    srd(a, S_G, 4, 0, D * F * 2)
    srd(a, S_H, 40, WS_H2, SZ_X)
    a(f"s_lshl_b32 s38, s43, 3\ns_lshl_b32 s39, s21, 1\ns_add_u32 s38, s38, s39\ns_mul_i32 s38, s38, 18432\ns_add_u32 s39, s38, 18432")
    a(f"s_mov_b32 s{sSO}, s{sFULL}")
    vm = []
    units = []
    for b in range(4): units += [("G", b, 0), ("G", b, 1), ("U", b, 0), ("U", b, 1)]
    units += [("N", 0, 0), ("N", 0, 1)] + [("D", i, 0) for i in range(9)] + [("X", i, 0) for i in range(3)]
    def dma_parts(kap, dyn=False):
        u, ks = divmod(kap, 9)
        ty, b, hf = units[u]
        pre = []
        if ks == 0 and hf == 0 and kap:
            if ty == "G": pre = [f"s_add_u32 s{sSO}, s{sFULL}, {128*b}"]
            if ty == "U": pre = [f"s_add_u32 s{sSO}, s{sFULL}, {128*b}"]
            if ty == "N": pre = [f"s_mov_b32 s{sSO}, s{sNAR}"]
            if ty in "DX":
                if dyn: pre = [f"s_add_u32 s{sCOL}, s{sCOL}, 128", f"s_mov_b32 s{sSO}, s{sCOL}"]
                else: pre = [f"s_add_u32 s{sSO}, s{sDRW}, {128*b}"]
        m0 = f"s_add_u32 m0, s{sDM}, {ks*4096}" if dyn else f"s_add_u32 m0, s{sW1K}, {(kap%36)*4096}"
        sd, vo = {"G": (S_G, VO_GU), "U": (S_U, VO_GU), "N": (S_N, VO_N), "D": (S_D, VO_D), "X": (S_D, VO_D)}[ty]
        dma = f"buffer_load_dwordx4 v{vo}, s[{sd}:{sd+3}], s{sSO} offen lds"
        if ty in "DX":
            post = [f"s_add_u32 s{sSO}, s{sSO}, s{sDL8}"] if ks == 7 else ([] if ks == 8 else [f"s_add_u32 s{sSO}, s{sSO}, {32*1152}"])
        else:
            post = [] if (ks == 8 and hf == 1) else [f"s_add_u32 s{sSO}, s{sSO}, {32*9216}"]
        return pre, m0, dma, post
    def emit_dma(kap):
        pre, m0, dma, post = dma_parts(kap)
        for x in pre: a(x)
        a(m0); a(dma); vm.append(("D", kap))
        for x in post: a(x)
    for j in range(6):
        for k in range(3): emit_dma(3 * j + k)
        for k in range(3):
            ks = 3 * j + k
            for rt in range(2):
                r = (rt * 18 + ks) * 4
                a(f"buffer_load_dwordx4 a[{r}:{r+3}], v{VO_H}, s[{S_H}:{S_H+3}], s{38+rt} offen offset:{(ks%4)*1024}")
                vm.append(("H", ks))
            if ks % 4 == 3: a("s_add_u32 s38, s38, 4096\ns_add_u32 s39, s39, 4096")
        if j == 0:
            srd(a, S_U, 6, 0, D * F * 2)
    for kap in range(18, 27): emit_dma(kap)
    a(f"s_cmp_ge_u32 s21, 2\ns_cselect_b32 s{S_N}, s6, s4\ns_cselect_b32 s{S_N+1}, s7, s5\ns_mov_b32 s{S_N+2}, {D*F*2}\ns_mov_b32 s{S_N+3}, 0x20000")
    srd(a, S_D, 36, 0, D * F * 2)
    srd(a, S_P, 40, WS_PART, SZ_PART)
    a(f"s_lshl_b32 s38, s43, 4\ns_add_u32 s38, s38, s42\ns_mul_i32 s{sST}, s38, 147456\ns_add_u32 s{sST2}, s{sST}, 18432")
    a("v_lshrrev_b32 v3, 4, v2\nv_bfe_u32 v4, v2, 2, 2\nv_and_b32 v5, 3, v2")
    a("v_lshl_add_u32 v6, v3, 3, v4\nv_lshlrev_b32 v6, 7, v6\nv_lshl_add_u32 v6, v5, 3, v6")
    a("v_lshrrev_b32 v7, 1, v4\nv_and_b32 v8, 1, v3\nv_lshl_or_b32 v7, v8, 1, v7\nv_lshl_add_u32 v6, v7, 5, v6")
    for g in range(4): a(f"v_xor_b32 v{VB+g}, {32*g}, v6\nv_mov_b32 v{VA+g}, v{VB+g}")
    a("v_lshrrev_b32 v6, 1, v3\nv_lshlrev_b32 v6, 10, v6\nv_lshl_add_u32 v7, v8, 2, v4\nv_lshl_add_u32 v6, v7, 6, v6\nv_lshl_add_u32 v6, v8, 5, v6\nv_lshl_add_u32 v6, v5, 3, v6")
    a(f"v_mov_b32 v{VN}, v6\nv_add_u32 v{VN+1}, 2048, v6\nv_xor_b32 v{VN+2}, 32, v6\nv_xor_b32 v{VN+3}, 32, v{VN+1}")
    def vmwait(pred):
        idx = max(i for i, t in enumerate(vm) if pred(t))
        return min(63, len(vm) - 1 - idx)
    def reads(n):
        u, g = divmod(n, 12); ss, gam = divmod(g, 4)
        out = []
        for k in range(3):
            for q in range(2):
                r = FR + (n % 3) * 12 + 4 * k + 2 * q
                out.append(f"ds_read_b64_tr_b16 a[{r}:{r+1}], v{VA+gam} offset:{(3*ss+k)*4096+q*512}")
        return out
    stamp()
    a(f"s_waitcnt vmcnt({vmwait(lambda t: t == ('D', 2))})\ns_barrier")
    for x in reads(0) + reads(1): a(x)
    a(f"s_waitcnt vmcnt({vmwait(lambda t: t == ('H', 2))})\ns_waitcnt lgkmcnt(6)")

    NU = 27
    gap_of = lambda u, g, k: u * 72 + g * 6 + k
    tasks = []
    def task(e, l, txt, deps=()):
        tasks.append([e, l, txt, list(deps), None]); return tasks[-1]
    def accr(u, gam, rt):
        ty = units[u][0]
        return ACC[0 if ty in "GN" else 1] + 8 * gam + 4 * rt
    for u, (ty, b, hf) in enumerate(units[:NU]):
        done = lambda gam: gap_of(u, 8 + gam, 5) + 4
        if ty == "G" and hf == 1:
            for gam in range(4):
                for e in range(8):
                    task(done(gam), gap_of(u + 2, 7, 0), f"v_max_f32 v{TG+8*gam+e}, 0, v{ACC[0]+8*gam+e}")
        if ty == "U" and hf == 1:
            for gam in range(4):
                mu = [task(done(gam), gap_of(u + 2, 5, 0), f"v_mul_f32 v{ACC[1]+8*gam+e}, v{TG+8*gam+e}, v{ACC[1]+8*gam+e}") for e in range(8)]
                for rt in range(2):
                    for h in range(2):
                        s_ = ACC[1] + 8 * gam + 4 * rt + 2 * h
                        d_ = H + 8 * (2 * b + gam // 2) + 4 * rt + 2 * (gam & 1) + h
                        task(done(gam), gap_of(u + 2, 5, 0), f"v_cvt_pk_bf16_f32 v{d_}, v{s_}, v{s_+1}", mu[4*rt+2*h:4*rt+2*h+2])
        if ty == "N" and hf == 1:
            dl = gap_of(u + 1, 7, 4)
            for uu in range(2):
                mx = [task(done(2 * uu), dl, f"v_max_f32 v{ACC[0]+16*uu+e}, 0, v{ACC[0]+16*uu+e}") for e in range(8)]
                mu = [task(done(2 * uu + 1), dl, f"v_mul_f32 v{ACC[0]+16*uu+e+8}, v{ACC[0]+16*uu+e}, v{ACC[0]+16*uu+e+8}", [mx[e]]) for e in range(8)]
                for rt in range(2):
                    for h in range(2):
                        s_ = ACC[0] + 16 * uu + 8 + 4 * rt + 2 * h
                        task(done(2 * uu + 1), dl, f"v_cvt_pk_bf16_f32 v{H+64+4*rt+2*uu+h}, v{s_}, v{s_+1}", mu[4*rt+2*h:4*rt+2*h+2])
        if ty == "D":
            for gam in range(4):
                for rt in range(2):
                    for h in range(2):
                        s_ = ACC[1] + 8 * gam + 4 * rt + 2 * h
                        d_ = STG + 8 * (gam // 2) + 4 * rt + 2 * (gam & 1) + h
                        task(done(gam), done(gam) + 12, f"v_cvt_pk_bf16_f32 v{d_}, v{s_}, v{s_+1}")
        if u + 1 < NU:
            base = VN if units[u + 1][0] == "N" else VB
            dyn = loop_d and units[u][0] == "D" and units[u][1] >= 1
            for gam in range(4):
                src = f"s{sRD}" if dyn else str(((u + 1) % 4) * UNIT)
                task(gap_of(u, 7 + gam, 0), gap_of(u, 9 + gam, 4) if gam < 3 else gap_of(u, 11, 4), f"v_add_u32 v{VA+gam}, {src}, v{base+gam}")
    vslot = {}
    def vcap(gp):
        k = gp % 6; u = gp // 72
        if u >= NU: return 99
        if k in (0, 1, 3, 4): return 1
        return 0
    for t in sorted(tasks, key=lambda t: t[1]):
        gp = max([t[0]] + [d[4] for d in t[3]])
        while len(vslot.get(gp, [])) >= vcap(gp): gp += 1
        assert gp <= t[1], (t, gp)
        t[4] = gp
        vslot.setdefault(gp, []).append(t[2])
    def stores(u):
        out = {}
        pos = {(0, 0): gap_of(u + 1, 0, 2), (0, 1): gap_of(u + 1, 4, 2), (1, 0): gap_of(u + 1, 4, 4), (1, 1): gap_of(u + 1, 8, 2)}
        return pos
    st_at = {}
    for u in range(18, NU):
        for (p, rt), gp in {(0, 0): gap_of(u + 1, 1, 4), (0, 1): gap_of(u + 1, 2, 4), (1, 0): gap_of(u + 1, 4, 2), (1, 1): gap_of(u + 1, 5, 4)}.items():
            r = STG + 8 * p + 4 * rt
            st_at[gp] = f"buffer_store_dwordx4 v[{r}:{r+3}], v{VO_ST}, s[{S_P}:{S_P+3}], s{sST2 if rt else sST} offen offset:{p*1024} {st_flags}".strip()

    a.strict = True
    body = {}
    for u in range(NU):
        ty, b, hf = units[u]
        dyn = loop_d and ty == "D" and b >= 1
        lines = []
        sq = []
        for g in range(12):
            ss, gam = divmod(g, 4)
            n = u * 12 + g
            rd = reads(n + 2) if n + 2 < NU * 12 else []
            j = u * 3 + ss
            sc = {0: [], 1: [], 3: [], 4: []}
            mid = None
            if gam == 0:
                fine = u < fine_units
                if fine or ss == 0:
                    upto = (j + 1 if (fine and not (u == fine_units - 1 and False)) else j + 3)
                    if fine and u + 1 == fine_units and ss == 2: upto = j + 1
                    need_k = min(3 * upto + 2, NU * 9 - 1)
                    mid = ("B", need_k)
            else:
                kap = 3 * (j + 9) + gam - 1
                pre, m0, dma, post = dma_parts(kap, dyn)
                sc[0] += pre; sc[1].append(m0); sc[3] += post
                mid = ("D", dma, kap)
            if dyn or (loop_d and ty == "D" and b == 0):
                pass
            if ty == "D" and loop_d:
                if g == 0 and dyn:
                    sc[3] += [f"s_add_u32 s{sDM}, s{sDM}, {UNIT}"]
                    sc[4] += [f"s_cmp_ge_u32 s{sDM}, {RING}"]
                    sc[0] += []
                if g == 8 and b >= 0:
                    pass
            for k in range(6):
                rt, kk = divmod(k, 3)
                ks = (9 * hf + 3 * ss + kk) if ty in "GUN" else 3 * ss + kk
                acc = accr(u, gam, rt)
                first = (ss == 0 and kk == 0 and (hf == 0 or ty == "D"))
                A = FR + (n % 3) * 12 + 4 * kk
                if ty in "GUN": B = f"a[{(rt*18+ks)*4}:{(rt*18+ks)*4+3}]"
                else: B = f"v[{H+8*ks+4*rt}:{H+8*ks+4*rt+3}]"
                lines.append(f"v_mfma_f32_16x16x32_bf16 v[{acc}:{acc+3}], a[{A}:{A+3}], {B}, " + ("0" if first else f"v[{acc}:{acc+3}]"))
                gp = gap_of(u, g, k)
                if k == 2:
                    if mid and mid[0] == "B": lines.append("s_barrier")
                    elif mid: lines.append(mid[1]); vm.append(("D", mid[2]))
                    elif gp in st_at: lines.append(st_at[gp]); vm.append(("S", gp))
                    continue
                if k == 5:
                    if rd or n + 1 < NU * 12:
                        lines.append(f"s_waitcnt lgkmcnt({4 if rd else 0})")
                    lines += rd[4:6]
                    continue
                s_ = list(sc[k])
                if k == 1 and mid and mid[0] == "B":
                    s_.append(("VM", mid[1]))
                if k == 4 and gam == 3 and j < 5:
                    s_.append(("HW", 3 * (j + 1) + 2))
                for x in s_:
                    if isinstance(x, tuple):
                        if x[0] == "VM": lines.append(("VMW", vmwait(lambda t: t == ("D", x[1]))))
                        else: lines.append(("VMW", vmwait(lambda t: t == ("H", x[1]))))
                    else: lines.append(x)
                ri = {0: 0, 1: 1, 3: 2, 4: 3}[k]
                if rd: lines.append(rd[ri])
                lines += vslot.get(gp, [])
                if gp in st_at: lines.append(st_at[gp]); vm.append(("S", gp))
            if ty == "D" and g == 6 and b >= 1:
                lines.append(f"s_add_u32 s{sST}, s{sST}, 2048"); lines.append(f"s_add_u32 s{sST2}, s{sST2}, 2048")
        body[u] = lines
    def put(lines, mins=None):
        i = 0
        for x in lines:
            if isinstance(x, tuple):
                a(f"s_waitcnt vmcnt({x[1] if mins is None else mins[i]})"); i += 1
            else: a(x)
    assert not loop_d
    for u in range(NU):
        if u == 24: a(f"s_mov_b32 s{S_D+2}, 0")
        if stamps is not None and u in stamps: stamp()
        put(body[u])
    a.strict = False
    for gp in sorted(vslot):
        if gp >= NU * 72:
            for x in vslot[gp]: a(x)
    for gp in sorted(st_at):
        if gp >= NU * 72: a(st_at[gp])
    if stamps is not None:
        stamp()
        a("s_waitcnt vmcnt(0)")
        stamp()
        a("s_waitcnt lgkmcnt(0)")
        srd(a, 8, 40, 0x9000000, 0x100000)
        a("s_lshl_b32 s38, s2, 2\ns_add_u32 s38, s38, s21\ns_lshl_b32 s38, s38, 7\nv_mov_b32 v2, 0")
        for i in range(nst[0]):
            a(f"v_mov_b32 v1, s{56+2*i}\nbuffer_store_dword v1, v2, s[8:11], s38 offen offset:{4*i}")
    a("K4_END:\ns_endpgm")
    return head(name) + a.finish() + "\n", kd(name, 256 + 184, 256), f"; @launch kernel={name} grid=(256,1,1) block=(256,1,1) lds={RING}"
```

```python
from build import *
from common import *
def probe(name, store, kb=144, base=0x6000000, fl="sc1"):
    a = Asm()
    a("s_cmp_ge_u32 s2, 256\ns_cbranch_scc1 %s_END" % name)
    a(f"s_load_dwordx2 s[40:41], s[0:1], {KA_WS}")
    a("v_lshlrev_b32 v1, 4, v0")
    a(f"s_mul_i32 s24, s2, {kb*1024}")
    a("s_waitcnt lgkmcnt(0)")
    srd(a, 8, 40, base, 256 * kb * 1024)
    for i in range(4): a(f"v_mov_b32 v{4+i}, v0")
    for i in range(kb // 4):
        if store: a(f"buffer_store_dwordx4 v[4:7], v1, s[8:11], s24 offen {fl}")
        else: a(f"buffer_load_dwordx4 v[{8+4*(i%40)}:{11+4*(i%40)}], v1, s[8:11], s24 offen")
        a("s_add_u32 s24, s24, 4096")
    a("s_waitcnt vmcnt(0)")
    a("%s_END:\ns_endpgm" % name)
    return head(name) + a.finish() + "\n", kd(name, 176, 176), f"; @launch kernel={name} grid=(256,1,1) block=(256,1,1) lds=0"
base = [k0(), k1(), k2(), k3(), k4(loop_d=False), k5()]
P = "cdna_kernels/"
build(P + "v_wb.s", [probe("pw_kernel", 1)] + base)
build(P + "v_we.s", base + [probe("pw_kernel", 1)])
build(P + "v_rb.s", [probe("pr_kernel", 0)] + base)
build(P + "v_we2.s", base + [probe("pw_kernel", 1, base=0xD000000)])
build(P + "v_we3.s", base + [probe("pw_kernel", 1, base=0x1000000)])
```
